```python
import torch

def _softmax(x, axis=-1):
    return torch.softmax(x, dim=axis)
def _gelu(x):
    return torch.nn.functional.gelu(x, approximate="tanh")
def _silu(x):
    return torch.nn.functional.silu(x)
def _sigmoid(x):
    return torch.sigmoid(x)
def _layernorm(x, axis=-1, eps=1e-5):
    m = x.mean(dim=axis, keepdim=True)
    v = x.var(dim=axis, keepdim=True, unbiased=False)
    return (x - m) / torch.sqrt(v + eps)
def _scatter_add(tgt, idx, src, axis=0):
    return tgt.clone().index_add_(axis, idx, src)
def _segment_sum(src, seg, n):
    out = torch.zeros((n,) + src.shape[1:], dtype=src.dtype)
    return out.index_add_(0, seg, src)
def _pad(x, pw):
    flat = tuple(v for pair in reversed(pw) for v in pair)
    return torch.nn.functional.pad(x, flat)

kernel_name = 'recurrent_scan__sliding_block__dense_activation_relu__prompt'

def setup_inputs():

    _w = (lambda a: (lambda t: t.to(torch.bfloat16) if t.is_floating_point() else t)(torch.as_tensor(a)))
    def _A_setup():
        B, S, D = 1, 2048, 640
        return {
            "x": _w((lambda *s: torch.randn(*s, dtype=torch.bfloat16) * 0.05)(B, S, D)),
            "wqkv": _w((lambda *s: torch.randn(*s, dtype=torch.bfloat16) * 0.05)(D, 3 * D)),
            "wo": _w((lambda *s: torch.randn(*s, dtype=torch.bfloat16) * 0.05)(D, D)),
        }
    _A_in = _A_setup()

    def _B_setup():
        B, S, D, Dff = 1, 2048, 640, 1536
        return {
            "x": _w((lambda *s: torch.randn(*s, dtype=torch.bfloat16) * 0.05)(B, S, D)),
            "w1": _w((lambda *s: torch.randn(*s, dtype=torch.bfloat16) * 0.05)(D, Dff)),
            "w2": _w((lambda *s: torch.randn(*s, dtype=torch.bfloat16) * 0.05)(Dff, D)),
        }
    _B_in = _B_setup()

    return {
        "A_x": _A_in["x"],
        "A_wqkv": _A_in["wqkv"],
        "A_wo": _A_in["wo"],
        "B_x": _B_in["x"],
        "B_w1": _B_in["w1"],
        "B_w2": _B_in["w2"],
    }

def reference(A_x, A_wqkv, A_wo, B_x, B_w1, B_w2):
    def _A_ref(x, wqkv, wo):
        B, S, D = x.shape
        H = 32; Dh = D // H; W = 256
        qkv = (lambda x, *d: x.permute(*d))((x @ wqkv).reshape(B, S, 3, H, Dh), 2, 0, 3, 1, 4)
        q, k, v = qkv[0], qkv[1], qkv[2]
        scores = torch.einsum("bhqd,bhkd->bhqk", q, k) * (Dh ** -0.5)
        idx = torch.arange(S)
        mask = (idx[:, None] - idx[None, :] >= 0) & (idx[:, None] - idx[None, :] < W)
        scores = torch.where(mask[None, None], scores, -1e9)
        p = _softmax(scores, axis=-1)
        o = torch.einsum("bhqk,bhkd->bhqd", p, v)
        return (lambda x, *d: x.permute(*d))(o, 0, 2, 1, 3).reshape(B, S, D) @ wo

    def _B_ref(x, w1, w2):
        h = torch.einsum("bsd,df->bsf", x, w1)
        zero = torch.zeros_like(h)
        h = torch.maximum(h, zero)
        return torch.einsum("bsf,fd->bsd", h, w2)

    x = A_x
    xn = _layernorm(x, axis=-1)
    s = _A_ref(xn, A_wqkv, A_wo)
    g = _silu(_B_ref(xn, B_w1, B_w2))
    return x + s * g
```

```python
import sys

NAME = "recurrent_scan__sliding_block__dense_activation_relu__prompt"
OUT = "cdna_kernels/%s.s" % NAME

XN_OFF = 0x0
QK_OFF = 0x400000
VT_OFF = 0xA00000
H_OFF = 0x1000000
O_OFF = 0x1800000
XN_SZ = 2048 * 1280
QK_SZ = 2048 * 2560
VT_SZ = 640 * 4096
H_SZ = 2048 * 3072
O_SZ = 2048 * 1280

KA_X, KA_WQKV, KA_WO, KA_BX, KA_W1, KA_W2, KA_OUT, KA_DBG, KA_WS = 0, 8, 16, 24, 32, 40, 48, 56, 64


class Asm:
    def __init__(self):
        self.lines = []
        self.uid = 0

    def __call__(self, s):
        for ln in s.strip("\n").split("\n"):
            self.lines.append("    " + ln.strip())

    def label(self, name):
        self.lines.append(name + ":")

    def newlabel(self, base):
        self.uid += 1
        return "L_%s_%d" % (base, self.uid)

    def raw(self, s):
        self.lines.append(s)

    def text(self):
        return "\n".join(self.lines) + "\n"


def vr(b, n=1):
    return "v%d" % b if n == 1 else "v[%d:%d]" % (b, b + n - 1)


def sr(b, n=1):
    return "s%d" % b if n == 1 else "s[%d:%d]" % (b, b + n - 1)


def srd(a, d, base, size):
    a("s_mov_b32 s%d, s%d" % (d, base))
    a("s_and_b32 s%d, s%d, 0xffff" % (d + 1, base + 1))
    a("s_mov_b32 s%d, 0x%x" % (d + 2, size))
    a("s_mov_b32 s%d, 0x20000" % (d + 3))


def srd_off(a, d, base, off, size):
    a("s_add_u32 s%d, s%d, 0x%x" % (d, base, off))
    a("s_addc_u32 s%d, s%d, 0" % (d + 1, base + 1))
    a("s_and_b32 s%d, s%d, 0xffff" % (d + 1, d + 1))
    a("s_mov_b32 s%d, 0x%x" % (d + 2, size))
    a("s_mov_b32 s%d, 0x20000" % (d + 3))


def kernel_header(a, name):
    a.raw(".globl %s" % name)
    a.raw(".p2align 8")
    a.raw(".type %s,@function" % name)
    a.label(name)


def kernel_desc(name, vgprs, sgprs=96):
    acc = (vgprs + 3) // 4 * 4
    return """.amdhsa_kernel %s
  .amdhsa_next_free_vgpr %d
  .amdhsa_next_free_sgpr %d
  .amdhsa_accum_offset %d
  .amdhsa_group_segment_fixed_size 0
  .amdhsa_kernarg_size 72
  .amdhsa_user_sgpr_count 2
  .amdhsa_user_sgpr_kernarg_segment_ptr 1
  .amdhsa_system_sgpr_workgroup_id_x 1
.end_amdhsa_kernel
""" % (name, vgprs, sgprs, acc)


def wave_sum(a, v, tmp):
    for off in (0x041F, 0x081F, 0x101F, 0x201F, 0x401F):
        a("ds_swizzle_b32 v%d, v%d offset:0x%04x" % (tmp, v, off))
        a("s_waitcnt lgkmcnt(0)")
        a("v_add_f32 v%d, v%d, v%d" % (v, v, tmp))
    a("s_nop 0")
    a("v_readlane_b32 s40, v%d, 0" % v)
    a("v_readlane_b32 s41, v%d, 32" % v)
    a("s_nop 1")
    a("v_mov_b32 v%d, s40" % v)
    a("v_add_f32 v%d, s41, v%d" % (v, v))


def bf16_round(a, v):
    a("v_cvt_pk_bf16_f32 v%d, v%d, v%d" % (v, v, v))
    a("v_lshlrev_b32 v%d, 16, v%d" % (v, v))


def gen_ln(a, name):
    kernel_header(a, name)
    end = a.newlabel("ln_end")
    a("s_cmp_ge_u32 s2, 512")
    a("s_cbranch_scc1 %s" % end)
    a("s_load_dwordx2 s[4:5], s[0:1], %d" % KA_X)
    a("s_load_dwordx2 s[6:7], s[0:1], %d" % KA_WS)
    a("v_lshrrev_b32 v1, 6, v0")
    a("v_and_b32 v2, 63, v0")
    a("s_lshl_b32 s3, s2, 2")
    a("v_add_u32 v1, s3, v1")
    a("v_mul_u32_u24 v3, 1280, v1")
    a("v_mul_u32_u24 v4, 20, v2")
    a("v_add_u32 v3, v3, v4")
    a("s_waitcnt lgkmcnt(0)")
    srd(a, 8, 4, XN_SZ)
    srd_off(a, 12, 6, XN_OFF, XN_SZ)
    a("buffer_load_dwordx4 v[8:11], v3, s[8:11], 0 offen")
    a("buffer_load_dword v12, v3, s[8:11], 0 offen offset:16")
    a("s_waitcnt vmcnt(0)")
    for i in range(5):
        a("v_lshlrev_b32 v%d, 16, v%d" % (16 + 2 * i, 8 + i))
        a("v_and_b32 v%d, 0xffff0000, v%d" % (17 + 2 * i, 8 + i))
    a("v_add_f32 v30, v16, v17")
    for i in range(2, 10):
        a("v_add_f32 v30, v30, v%d" % (16 + i))
    wave_sum(a, 30, 31)
    a("v_mul_f32 v30, 0x3acccccd, v30")
    a("v_sub_f32 v32, v16, v30")
    a("v_mul_f32 v33, v32, v32")
    for i in range(1, 10):
        a("v_sub_f32 v32, v%d, v30" % (16 + i))
        a("v_fmac_f32 v33, v32, v32")
    wave_sum(a, 33, 31)
    a("v_mul_f32 v33, 0x3acccccd, v33")
    bf16_round(a, 33)
    a("v_add_f32 v33, 0x3727c5ac, v33")
    bf16_round(a, 33)
    a("v_sqrt_f32 v33, v33")
    a("s_nop 0")
    bf16_round(a, 33)
    bf16_round(a, 30)
    a("v_rcp_f32 v34, v33")
    a("s_nop 0")
    a("v_fma_f32 v35, -v33, v34, 1.0")
    a("v_fma_f32 v34, v35, v34, v34")
    for i in range(10):
        a("v_sub_f32 v%d, v%d, v30" % (16 + i, 16 + i))
    for i in range(5):
        a("v_cvt_pk_bf16_f32 v%d, v%d, v%d" % (8 + i, 16 + 2 * i, 17 + 2 * i))
    for i in range(5):
        a("v_lshlrev_b32 v%d, 16, v%d" % (16 + 2 * i, 8 + i))
        a("v_and_b32 v%d, 0xffff0000, v%d" % (17 + 2 * i, 8 + i))
    for i in range(10):
        a("v_mul_f32 v36, v%d, v34" % (16 + i))
        a("v_fma_f32 v37, -v36, v33, v%d" % (16 + i))
        a("v_fma_f32 v%d, v37, v34, v36" % (16 + i))
    for i in range(5):
        a("v_cvt_pk_bf16_f32 v%d, v%d, v%d" % (8 + i, 16 + 2 * i, 17 + 2 * i))
    a("buffer_store_dwordx4 v[8:11], v3, s[12:15], 0 offen")
    a("buffer_store_dword v12, v3, s[12:15], 0 offen offset:16")
    a.label(end)
    a("s_endpgm")


def gen_gemm1(a, name):
    kernel_header(a, name)
    end = a.newlabel("g1_end")
    a("s_cmp_ge_u32 s2, 216")
    a("s_cbranch_scc1 %s" % end)
    a("s_load_dwordx2 s[4:5], s[0:1], %d" % KA_WQKV)
    a("s_load_dwordx2 s[6:7], s[0:1], %d" % KA_W1)
    a("s_load_dwordx2 s[8:9], s[0:1], %d" % KA_WS)
    a("s_and_b32 s24, s2, 7")
    a("s_lshr_b32 s25, s2, 3")
    a("v_lshrrev_b32 v1, 6, v0")
    a("s_nop 0")
    a("v_readfirstlane_b32 s26, v1")
    a("v_and_b32 v2, 63, v0")
    a("s_waitcnt lgkmcnt(0)")
    srd_off(a, 12, 8, XN_OFF, XN_SZ)
    lw = a.newlabel("g1_w1")
    lw2 = a.newlabel("g1_wdone")
    a("s_cmp_ge_u32 s25, 15")
    a("s_cbranch_scc1 %s" % lw)
    srd(a, 16, 4, 640 * 3840)
    a("s_movk_i32 s27, 3840")
    a("s_lshl_b32 s28, s25, 8")
    a("s_branch %s" % lw2)
    a.label(lw)
    srd(a, 16, 6, 640 * 3072)
    a("s_movk_i32 s27, 3072")
    a("s_sub_u32 s28, s25, 15")
    a("s_lshl_b32 s28, s28, 8")
    a.label(lw2)
    a("s_lshr_b32 s29, s26, 1")
    a("s_and_b32 s30, s26, 1")
    a("v_and_b32 v3, 31, v2")
    a("v_lshrrev_b32 v4, 5, v2")
    a("s_lshl_b32 s31, s24, 8")
    a("s_lshl_b32 s32, s29, 6")
    a("s_add_u32 s31, s31, s32")
    a("v_add_u32 v5, s31, v3")
    a("v_mul_u32_u24 v6, 1280, v5")
    a("v_lshl_add_u32 v6, v4, 6, v6")
    a("v_add_u32 v7, 0x%x, v6" % (32 * 1280))
    a("v_lshrrev_b32 v8, 4, v2")
    a("v_and_b32 v9, 15, v2")
    a("v_lshlrev_b32 v10, 2, v8")
    a("v_xor_b32 v9, v9, v10")
    a("v_lshlrev_b32 v9, 4, v9")
    a("v_mul_lo_u32 v10, v8, s27")
    a("v_add3_u32 v8, v9, v10, s28")
    a("s_lshl_b32 s33, s26, 3")
    a("s_mul_i32 s33, s33, s27")
    a("s_lshl_b32 s34, s27, 2")
    a("s_add_u32 s34, s33, s34")
    a("s_lshl_b32 s35, s27, 6")
    a("s_lshl_b32 s36, s26, 11")
    a("v_bfe_u32 v9, v2, 2, 2")
    a("v_and_b32 v10, 3, v2")
    a("v_bfe_u32 v11, v2, 4, 1")
    a("v_lshl_add_u32 v12, v4, 5, v9")
    a("v_lshlrev_b32 v12, 8, v12")
    a("v_lshl_add_u32 v12, v11, 5, v12")
    a("v_lshl_add_u32 v12, v10, 3, v12")
    a("s_lshl_b32 s37, s30, 1")
    a("v_xor_b32 v13, s37, v9")
    a("v_lshl_add_u32 v13, v13, 6, v12")
    a("s_add_u32 s37, s37, 1")
    a("v_xor_b32 v14, s37, v9")
    a("v_lshl_add_u32 v14, v14, 6, v12")
    VB = (13, 14)
    VA = (6, 7)
    VW = 8
    ABUF = (32, 64)
    BBUF = (96, 112)
    ACC = 128

    def issue_loads(kc):
        buf = kc & 1
        for e in range(2):
            a("s_add_u32 m0, s36, 0x%x" % (buf * 16384 + e * 1024))
            a("s_nop 0")
            a("buffer_load_dwordx4 v%d, s[16:19], s%d offen lds" % (VW, 33 + e))
        a("s_add_u32 s33, s33, s35")
        a("s_add_u32 s34, s34, s35")
        for tm in range(2):
            for j in range(4):
                a("buffer_load_dwordx4 %s, v%d, s[12:15], 0 offen offset:%d" % (
                    vr(ABUF[buf] + tm * 16 + j * 4, 4), VA[tm], kc * 128 + j * 16))

    def read_b(kc, j, set_):
        buf = kc & 1
        for tn in range(2):
            for half in range(2):
                a("ds_read_b64_tr_b16 %s, v%d offset:%d" % (
                    vr(BBUF[set_] + tn * 4 + half * 2, 2), VB[tn], buf * 16384 + j * 2048 + half * 1024))

    def body(vtile):
        first = True
        issue_loads(0)
        a("s_waitcnt vmcnt(0)")
        a("s_barrier")
        for kc in range(10):
            if kc + 1 < 10:
                issue_loads(kc + 1)
            read_b(kc, 0, 0)
            for j in range(4):
                if j + 1 < 4:
                    read_b(kc, j + 1, (j + 1) & 1)
                    a("s_waitcnt lgkmcnt(4)")
                else:
                    a("s_waitcnt lgkmcnt(0)")
                for tm in range(2):
                    for tn in range(2):
                        acc = vr(ACC + (tm * 2 + tn) * 16, 16)
                        af = vr(ABUF[kc & 1] + tm * 16 + j * 4, 4)
                        bf = vr(BBUF[j & 1] + tn * 4, 4)
                        srcc = "0" if first else acc
                        if vtile:
                            a("v_mfma_f32_32x32x16_bf16 %s, %s, %s, %s" % (acc, af, bf, srcc))
                        else:
                            a("v_mfma_f32_32x32x16_bf16 %s, %s, %s, %s" % (acc, bf, af, srcc))
                first = False
            a("s_waitcnt vmcnt(0)")
            a("s_barrier")
        a("s_nop 15")

    lv = a.newlabel("g1_v")
    a("s_cmp_lt_u32 s25, 10")
    lq = a.newlabel("g1_q")
    a("s_cbranch_scc1 %s" % lq)
    a("s_cmp_lt_u32 s25, 15")
    a("s_cbranch_scc1 %s" % lv)
    a.label(lq)
    body(False)
    lh = a.newlabel("g1_h")
    lh2 = a.newlabel("g1_hd")
    a("s_cmp_ge_u32 s25, 15")
    a("s_cbranch_scc1 %s" % lh)
    srd_off(a, 20, 8, QK_OFF, QK_SZ)
    a("s_movk_i32 s38, 2560")
    a("s_lshl_b32 s39, s25, 8")
    a("s_mov_b32 s40, 0")
    a("s_branch %s" % lh2)
    a.label(lh)
    srd_off(a, 20, 8, H_OFF, H_SZ)
    a("s_movk_i32 s38, 3072")
    a("s_sub_u32 s39, s25, 15")
    a("s_lshl_b32 s39, s39, 8")
    a("s_mov_b32 s40, 1")
    a.label(lh2)
    a("v_mul_lo_u32 v20, v5, s38")
    a("s_lshl_b32 s41, s30, 7")
    a("s_add_u32 s41, s41, s39")
    a("v_lshl_add_u32 v20, v4, 3, v20")
    a("v_add_u32 v20, s41, v20")
    a("s_lshl_b32 s42, s38, 5")
    a("v_add_u32 v21, s42, v20")
    lnr = a.newlabel("g1_norelu")
    a("s_cmp_eq_u32 s40, 0")
    a("s_cbranch_scc1 %s" % lnr)
    for i in range(64):
        a("v_max_f32 v%d, 0, v%d" % (ACC + i, ACC + i))
    a.label(lnr)
    for tm in range(2):
        for tn in range(2):
            base = ACC + (tm * 2 + tn) * 16
            for rg in range(4):
                a("v_cvt_pk_bf16_f32 v%d, v%d, v%d" % (base + rg * 4, base + rg * 4, base + rg * 4 + 1))
                a("v_cvt_pk_bf16_f32 v%d, v%d, v%d" % (base + rg * 4 + 1, base + rg * 4 + 2, base + rg * 4 + 3))
                a("buffer_store_dwordx2 %s, v%d, s[20:23], 0 offen offset:%d" % (
                    vr(base + rg * 4, 2), 20 + tm, tn * 64 + rg * 16))
    a("s_endpgm")
    a.label(lv)
    body(True)
    srd_off(a, 20, 8, VT_OFF, VT_SZ)
    a("s_sub_u32 s38, s25, 10")
    a("s_lshl_b32 s38, s38, 7")
    a("s_lshl_b32 s39, s30, 6")
    a("s_add_u32 s38, s38, s39")
    a("v_add_u32 v20, s38, v3")
    a("v_lshlrev_b32 v20, 12, v20")
    a("s_lshl_b32 s39, s31, 1")
    a("v_lshl_add_u32 v20, v4, 3, v20")
    a("v_add_u32 v20, s39, v20")
    a("v_add_u32 v21, 0x%x, v20" % (32 * 4096))
    for tm in range(2):
        for tn in range(2):
            base = ACC + (tm * 2 + tn) * 16
            for rg in range(4):
                a("v_cvt_pk_bf16_f32 v%d, v%d, v%d" % (base + rg * 4, base + rg * 4, base + rg * 4 + 1))
                a("v_cvt_pk_bf16_f32 v%d, v%d, v%d" % (base + rg * 4 + 1, base + rg * 4 + 2, base + rg * 4 + 3))
                a("buffer_store_dwordx2 %s, v%d, s[20:23], 0 offen offset:%d" % (
                    vr(base + rg * 4, 2), 20 + tn, tm * 64 + rg * 16))
    a.label(end)
    a("s_endpgm")


def gen_attn(a, name):
    kernel_header(a, name)
    end = a.newlabel("at_end")
    a("s_cmp_ge_u32 s2, 512")
    a("s_cbranch_scc1 %s" % end)
    a("s_load_dwordx2 s[8:9], s[0:1], %d" % KA_WS)
    a("v_lshrrev_b32 v1, 6, v0")
    a("s_nop 0")
    a("v_readfirstlane_b32 s26, v1")
    a("v_and_b32 v2, 63, v0")
    a("s_lshr_b32 s24, s2, 4")
    a("s_and_b32 s25, s2, 15")
    a("s_lshl_b32 s25, s25, 2")
    a("s_add_u32 s25, s25, s26")
    a("s_waitcnt lgkmcnt(0)")
    srd_off(a, 12, 8, QK_OFF, QK_SZ)
    srd_off(a, 16, 8, VT_OFF, VT_SZ + 0x10000)
    srd_off(a, 20, 8, O_OFF, O_SZ)
    a("v_and_b32 v3, 31, v2")
    a("v_lshrrev_b32 v4, 5, v2")
    a("s_lshl_b32 s27, s25, 5")
    a("s_mul_i32 s28, s24, 40")
    a("v_add_u32 v5, s27, v3")
    a("v_mul_u32_u24 v6, 2560, v5")
    a("v_lshl_add_u32 v6, v4, 4, v6")
    a("v_add_u32 v6, s28, v6")
    QF = 8
    a("buffer_load_dwordx4 v[8:11], v6, s[12:15], 0 offen")
    a("buffer_load_dwordx2 v[12:13], v6, s[12:15], 0 offen offset:32")
    a("v_mov_b32 v14, 0")
    a("v_mov_b32 v15, 0")
    a("v_subrev_u32 v7, 0x%x, v6" % (256 * 2560 - 1280))
    a("s_sub_u32 s29, 8, s25")
    a("s_cmp_lt_u32 s25, 8")
    a("s_cselect_b32 s29, s29, 0")
    KF = 160
    SACC = 16
    for i in range(144):
        a("v_mov_b32 v%d, 0xf149f2ca" % (SACC + i))
    for t in range(9):
        a("v_mov_b32 v%d, 0" % (KF + t * 8 + 6))
        a("v_mov_b32 v%d, 0" % (KF + t * 8 + 7))
    for t in range(9):
        sk = a.newlabel("at_kskip")
        a("s_cmp_gt_u32 s29, %d" % t)
        a("s_cbranch_scc1 %s" % sk)
        off = t * 32 * 2560
        a("v_add_u32 v240, 0x%x, v7" % off)
        a("buffer_load_dwordx4 %s, v240, s[12:15], 0 offen" % vr(KF + t * 8, 4))
        a("buffer_load_dwordx2 %s, v240, s[12:15], 0 offen offset:32" % vr(KF + t * 8 + 4, 2))
        a.label(sk)
    a("v_cmp_eq_u32 vcc, 0, v4")
    a("s_waitcnt vmcnt(0)")
    a("v_cndmask_b32 v12, 0, v12, vcc")
    a("v_cndmask_b32 v13, 0, v13, vcc")
    for t in range(9):
        a("v_cndmask_b32 v%d, 0, v%d, vcc" % (KF + t * 8 + 4, KF + t * 8 + 4))
        a("v_cndmask_b32 v%d, 0, v%d, vcc" % (KF + t * 8 + 5, KF + t * 8 + 5))
    a("s_nop 1")
    for t in range(9):
        sk = a.newlabel("at_sskip")
        a("s_cmp_gt_u32 s29, %d" % t)
        a("s_cbranch_scc1 %s" % sk)
        acc = vr(SACC + t * 16, 16)
        a("v_mfma_f32_32x32x16_bf16 %s, %s, %s, 0" % (acc, vr(KF + t * 8, 4), vr(8, 4)))
        a("v_mfma_f32_32x32x16_bf16 %s, %s, %s, %s" % (acc, vr(KF + t * 8 + 4, 4), vr(12, 4), acc))
        a.label(sk)
    a("s_nop 7")
    a("s_mul_i32 s30, s24, 20")
    a("v_add_u32 v241, s30, v3")
    a("v_lshlrev_b32 v241, 12, v241")
    a("v_lshl_add_u32 v241, v4, 3, v241")
    a("s_lshl_b32 s31, s27, 1")
    a("v_add_u32 v241, s31, v241")
    a("v_subrev_u32 v241, 512, v241")
    for t in range(9):
        sk = a.newlabel("at_vskip")
        a("s_cmp_gt_u32 s29, %d" % t)
        a("s_cbranch_scc1 %s" % sk)
        a("v_add_u32 v240, %d, v241" % (t * 64))
        for q in range(4):
            a("buffer_load_dwordx2 %s, v240, s[16:19], 0 offen offset:%d" % (vr(KF + t * 8 + q * 2, 2), q * 16))
        a.label(sk)
    a("s_nop 7")
    a("v_lshlrev_b32 v242, 2, v4")
    for r in range(16):
        b0 = 8 * (r >> 2) + (r & 3)
        a("v_add_u32 v243, %d, v242" % b0)
        a("v_cmp_le_u32 vcc, v243, v3")
        a("v_mov_b32 v244, 0xf149f2ca")
        a("s_nop 0")
        a("v_cndmask_b32 v%d, v244, v%d, vcc" % (SACC + 8 * 16 + r, SACC + 8 * 16 + r))
        a("v_cndmask_b32 v%d, v%d, v244, vcc" % (SACC + r, SACC + r))
    a("v_max_f32 v245, v%d, v%d" % (SACC, SACC + 1))
    for i in range(2, 144, 2):
        a("v_max3_f32 v245, v245, v%d, v%d" % (SACC + i, SACC + i + 1))
    a("v_xor_b32 v246, 32, v2")
    a("v_lshlrev_b32 v246, 2, v246")
    a("ds_bpermute_b32 v247, v246, v245")
    a("s_waitcnt lgkmcnt(0)")
    a("v_max_f32 v245, v245, v247")
    import math
    c = (20 ** -0.5) * math.log2(math.e)
    a("s_mov_b32 s32, 0x%08x" % f32bits(c))
    a("v_mul_f32 v245, s32, v245")
    a("v_sub_f32 v245, 0, v245")
    for i in range(144):
        a("v_fma_f32 v%d, v%d, s32, v245" % (SACC + i, SACC + i))
        a("v_exp_f32 v%d, v%d" % (SACC + i, SACC + i))
    a("s_nop 0")
    for t in range(9):
        for i in range(8):
            a("v_cvt_pk_bf16_f32 v%d, v%d, v%d" % (SACC + t * 16 + i, SACC + t * 16 + i * 2, SACC + t * 16 + i * 2 + 1))
    a("v_cmp_gt_u32 s[34:35], 20, v3")
    a("v_cmp_eq_u32 s[36:37], 20, v3")
    a("v_mov_b32 v244, 0x3f803f80")
    a("s_nop 1")
    a("v_cndmask_b32 v243, 0, v244, s[36:37]")
    a("s_waitcnt vmcnt(0)")
    for t in range(9):
        for i in range(8):
            a("v_cndmask_b32 v%d, v243, v%d, s[34:35]" % (KF + t * 8 + i, KF + t * 8 + i))
    a("s_nop 1")
    OACC = 232
    for i in range(16):
        a("v_mov_b32 v%d, 0" % (OACC + i))
    a("s_nop 1")
    for t in range(9):
        sk = a.newlabel("at_pskip")
        a("s_cmp_gt_u32 s29, %d" % t)
        a("s_cbranch_scc1 %s" % sk)
        acc = vr(OACC, 16)
        a("v_mfma_f32_32x32x16_bf16 %s, %s, %s, %s" % (acc, vr(KF + t * 8, 4), vr(SACC + t * 16, 4), acc))
        a("v_mfma_f32_32x32x16_bf16 %s, %s, %s, %s" % (acc, vr(KF + t * 8 + 4, 4), vr(SACC + t * 16 + 4, 4), acc))
        a.label(sk)
    a("s_nop 15")
    a("v_or_b32 v250, 32, v2")
    a("v_lshlrev_b32 v250, 2, v250")
    a("ds_bpermute_b32 v251, v250, v%d" % (OACC + 8))
    a("s_waitcnt lgkmcnt(0)")
    a("v_rcp_f32 v251, v251")
    a("s_nop 0")
    for i in range(12):
        a("v_mul_f32 v%d, v%d, v251" % (OACC + i, OACC + i))
    for rg in range(3):
        a("v_cvt_pk_bf16_f32 v%d, v%d, v%d" % (OACC + rg * 4, OACC + rg * 4, OACC + rg * 4 + 1))
        a("v_cvt_pk_bf16_f32 v%d, v%d, v%d" % (OACC + rg * 4 + 1, OACC + rg * 4 + 2, OACC + rg * 4 + 3))
    a("v_mul_u32_u24 v252, 1280, v5")
    a("v_lshl_add_u32 v252, v4, 3, v252")
    a("v_add_u32 v252, s28, v252")
    a("buffer_store_dwordx2 %s, v252, s[20:23], 0 offen" % vr(OACC, 2))
    a("buffer_store_dwordx2 %s, v252, s[20:23], 0 offen offset:16" % vr(OACC + 4, 2))
    a("v_cmp_eq_u32 vcc, 0, v4")
    a("s_and_saveexec_b64 s[38:39], vcc")
    a("buffer_store_dwordx2 %s, v252, s[20:23], 0 offen offset:32" % vr(OACC + 8, 2))
    a.label(end)
    a("s_endpgm")


def f32bits(x):
    import struct
    return struct.unpack("<I", struct.pack("<f", x))[0]


def gen_gemm2(a, name):
    kernel_header(a, name)
    end = a.newlabel("g2_end")
    a("s_cmp_ge_u32 s2, 160")
    a("s_cbranch_scc1 %s" % end)
    a("s_load_dwordx2 s[4:5], s[0:1], %d" % KA_WO)
    a("s_load_dwordx2 s[6:7], s[0:1], %d" % KA_W2)
    a("s_load_dwordx2 s[8:9], s[0:1], %d" % KA_WS)
    a("s_load_dwordx2 s[10:11], s[0:1], %d" % KA_X)
    a("s_load_dwordx2 s[44:45], s[0:1], %d" % KA_OUT)
    a("s_and_b32 s24, s2, 15")
    a("s_lshr_b32 s25, s2, 4")
    a("v_lshrrev_b32 v1, 6, v0")
    a("s_nop 0")
    a("v_readfirstlane_b32 s26, v1")
    a("v_and_b32 v2, 63, v0")
    a("s_waitcnt lgkmcnt(0)")
    a("s_lshr_b32 s29, s26, 1")
    a("s_and_b32 s30, s26, 1")
    a("v_and_b32 v3, 31, v2")
    a("v_lshrrev_b32 v4, 5, v2")
    a("s_lshl_b32 s31, s24, 7")
    a("s_lshl_b32 s32, s29, 6")
    a("s_add_u32 s31, s31, s32")
    a("v_add_u32 v5, s31, v3")
    a("v_lshrrev_b32 v8, 3, v2")
    a("v_and_b32 v9, 7, v2")
    a("v_bfe_u32 v10, v2, 4, 1")
    a("v_lshlrev_b32 v10, 2, v10")
    a("v_xor_b32 v9, v9, v10")
    a("v_lshlrev_b32 v9, 4, v9")
    a("v_mul_u32_u24 v10, 1280, v8")
    a("s_lshl_b32 s28, s25, 7")
    a("v_add3_u32 v8, v9, v10, s28")
    a("s_mul_i32 s33, s26, %d" % (16 * 1280))
    a("s_add_u32 s34, s33, %d" % (8 * 1280))
    a("s_lshl_b32 s36, s26, 11")
    a("v_bfe_u32 v9, v2, 2, 2")
    a("v_and_b32 v10, 3, v2")
    a("v_bfe_u32 v11, v2, 4, 1")
    a("v_lshl_add_u32 v12, v4, 5, v9")
    a("v_lshlrev_b32 v12, 7, v12")
    a("v_lshl_add_u32 v12, v11, 5, v12")
    a("v_lshl_add_u32 v12, v10, 3, v12")
    a("v_bfe_u32 v13, v9, 1, 1")
    a("v_xor_b32 v13, s30, v13")
    a("v_lshl_add_u32 v13, v13, 6, v12")
    VB = 13
    VW = 8
    ABUF = (32, 64)
    BBUF = (96, 104)
    ACC1 = 112
    ACC2 = 144

    def phase(acc0, nchunks, a_srd, a_stride, w_srd, a_off_reg):
        a("v_mul_u32_u24 v6, %d, v5" % a_stride)
        a("v_lshl_add_u32 v6, v4, 6, v6")
        a("v_add_u32 v7, 0x%x, v6" % (32 * a_stride))
        a("s_mov_b32 s46, s33")
        a("s_mov_b32 s47, s34")
        a("s_mov_b32 s48, 0")
        for i in range(32):
            a("v_mov_b32 v%d, 0" % (acc0 + i))

        def issue(buf):
            for e in range(2):
                a("s_add_u32 m0, s36, 0x%x" % (buf * 8192 + e * 1024))
                a("s_nop 0")
                a("buffer_load_dwordx4 v%d, %s, s%d offen lds" % (VW, sr(w_srd, 4), 46 + e))
            a("s_add_u32 s46, s46, %d" % (64 * 1280))
            a("s_add_u32 s47, s47, %d" % (64 * 1280))
            for tm in range(2):
                for j in range(4):
                    a("buffer_load_dwordx4 %s, v%d, %s, s48 offen offset:%d" % (
                        vr(ABUF[buf] + tm * 16 + j * 4, 4), 6 + tm, sr(a_srd, 4), j * 16))
            a("s_add_u32 s48, s48, 128")

        def read_b(buf, j, set_):
            for half in range(2):
                a("ds_read_b64_tr_b16 %s, v%d offset:%d" % (
                    vr(BBUF[set_] + half * 2, 2), VB, buf * 8192 + j * 1024 + half * 512))

        def compute(buf):
            read_b(buf, 0, 0)
            for j in range(4):
                if j + 1 < 4:
                    read_b(buf, j + 1, (j + 1) & 1)
                    a("s_waitcnt lgkmcnt(2)")
                else:
                    a("s_waitcnt lgkmcnt(0)")
                for tm in range(2):
                    acc = vr(acc0 + tm * 16, 16)
                    a("v_mfma_f32_32x32x16_bf16 %s, %s, %s, %s" % (
                        acc, vr(BBUF[j & 1], 4), vr(ABUF[buf] + tm * 16 + j * 4, 4), acc))

        issue(0)
        a("s_waitcnt vmcnt(0)")
        a("s_barrier")
        a("s_mov_b32 s49, 0")
        lp = a.newlabel("g2_loop")
        a.label(lp)
        issue(1)
        compute(0)
        a("s_waitcnt vmcnt(0)")
        a("s_barrier")
        lk = a.newlabel("g2_nopf")
        a("s_add_u32 s49, s49, 2")
        a("s_cmp_ge_u32 s49, %d" % nchunks)
        a("s_cbranch_scc1 %s" % lk)
        issue(0)
        a.label(lk)
        compute(1)
        a("s_waitcnt vmcnt(0)")
        a("s_barrier")
        a("s_cmp_lt_u32 s49, %d" % nchunks)
        a("s_cbranch_scc1 %s" % lp)

    srd_off(a, 12, 8, O_OFF, O_SZ)
    srd(a, 16, 4, 640 * 1280)
    phase(ACC1, 10, 12, 1280, 16, None)
    srd_off(a, 12, 8, H_OFF, H_SZ)
    srd(a, 16, 6, 1536 * 1280)
    phase(ACC2, 24, 12, 3072, 16, None)
    a("s_nop 15")
    srd(a, 20, 10, 2048 * 1280)
    srd(a, 40, 44, 2048 * 1280)
    a("v_mul_u32_u24 v20, 1280, v5")
    a("s_lshl_b32 s50, s25, 7")
    a("s_lshl_b32 s51, s30, 6")
    a("s_add_u32 s50, s50, s51")
    a("v_lshl_add_u32 v20, v4, 3, v20")
    a("v_add_u32 v20, s50, v20")
    a("v_add_u32 v21, 0x%x, v20" % (32 * 1280))
    XB = 32
    for tm in range(2):
        for rg in range(4):
            a("buffer_load_dwordx2 %s, v%d, s[20:23], 0 offen offset:%d" % (vr(XB + (tm * 4 + rg) * 2, 2), 20 + tm, rg * 16))
    a("s_mov_b32 s52, 0xbfb8aa3b")
    for tm in range(2):
        for rg in range(4):
            for i in range(4):
                s_ = ACC1 + tm * 16 + rg * 4 + i
                t_ = ACC2 + tm * 16 + rg * 4 + i
                bf16_round(a, s_)
                bf16_round(a, t_)
                a("v_mul_f32 v60, s52, v%d" % t_)
                a("v_exp_f32 v60, v60")
                a("s_nop 0")
                a("v_add_f32 v60, 1.0, v60")
                a("v_rcp_f32 v61, v60")
                a("s_nop 0")
                a("v_mul_f32 v%d, v%d, v61" % (t_, t_))
                bf16_round(a, t_)
                a("v_mul_f32 v%d, v%d, v%d" % (s_, s_, t_))
                bf16_round(a, s_)
    a("s_waitcnt vmcnt(0)")
    for tm in range(2):
        for rg in range(4):
            xb = XB + (tm * 4 + rg) * 2
            s0 = ACC1 + tm * 16 + rg * 4
            a("v_lshlrev_b32 v60, 16, v%d" % xb)
            a("v_and_b32 v61, 0xffff0000, v%d" % xb)
            a("v_add_f32 v%d, v60, v%d" % (s0, s0))
            a("v_add_f32 v%d, v61, v%d" % (s0 + 1, s0 + 1))
            a("v_lshlrev_b32 v60, 16, v%d" % (xb + 1))
            a("v_and_b32 v61, 0xffff0000, v%d" % (xb + 1))
            a("v_add_f32 v%d, v60, v%d" % (s0 + 2, s0 + 2))
            a("v_add_f32 v%d, v61, v%d" % (s0 + 3, s0 + 3))
            a("v_cvt_pk_bf16_f32 v%d, v%d, v%d" % (s0, s0, s0 + 1))
            a("v_cvt_pk_bf16_f32 v%d, v%d, v%d" % (s0 + 1, s0 + 2, s0 + 3))
            a("buffer_store_dwordx2 %s, v%d, s[40:43], 0 offen offset:%d" % (vr(s0, 2), 20 + tm, rg * 16))
    a.label(end)
    a("s_endpgm")


def main():
    hdr = open("cdna_kernels/%s.s.ref" % NAME).read().split("\n")
    head = [l for l in hdr if l.startswith(";") and "@launch" not in l]
    a = Asm()
    launches = [
        ("ln_kernel", 512, 256, 0),
        ("gemm1_kernel", 216, 512, 32768),
        ("attn_kernel", 512, 256, 0),
        ("gemm2_kernel", 160, 256, 16384),
    ]
    out = "\n".join(head) + "\n"
    for k, g, b, l in launches:
        out += "; @launch kernel=%s grid=(%d,1,1) block=(%d,1,1) lds=%d\n" % (k, g, b, l)
    out += '.amdgcn_target "amdgcn-amd-amdhsa--gfx950"\n.text\n'
    gen_ln(a, "ln_kernel")
    gen_gemm1(a, "gemm1_kernel")
    gen_attn(a, "attn_kernel")
    gen_gemm2(a, "gemm2_kernel")
    out += a.text()
    out += '.section .rodata,"a"\n.p2align 6\n'
    out += kernel_desc("ln_kernel", 64)
    out += ".p2align 6\n" + kernel_desc("gemm1_kernel", 192)
    out += ".p2align 6\n" + kernel_desc("attn_kernel", 256)
    out += ".p2align 6\n" + kernel_desc("gemm2_kernel", 176)
    open(OUT, "w").write(out)


if __name__ == "__main__":
    main()
```

```python
import sys, os
EXP = os.environ.get('EXP', '')

NAME = "recurrent_scan__sliding_block__dense_activation_relu__prompt"
OUT = os.environ.get("OUT", "cdna_kernels/%s.s" % NAME)

XN_OFF = 0x0
QK_OFF = 0x400000
VT_OFF = 0xA00000
H_OFF = 0x1000000
O_OFF = 0x1800000
XN_SZ = 2048 * 1280
QK_SZ = 2048 * 2560
VT_SZ = 640 * 4096
H_SZ = 2048 * 3072
O_SZ = 2048 * 1280

KA_X, KA_WQKV, KA_WO, KA_BX, KA_W1, KA_W2, KA_OUT, KA_DBG, KA_WS = 0, 8, 16, 24, 32, 40, 48, 56, 64


class Asm:
    def __init__(self):
        self.lines = []
        self.uid = 0

    def __call__(self, s):
        for ln in s.strip("\n").split("\n"):
            self.lines.append("    " + ln.strip())

    def label(self, name):
        self.lines.append(name + ":")

    def newlabel(self, base):
        self.uid += 1
        return "L_%s_%d" % (base, self.uid)

    def raw(self, s):
        self.lines.append(s)

    def text(self):
        return "\n".join(self.lines) + "\n"


def vr(b, n=1):
    return "v%d" % b if n == 1 else "v[%d:%d]" % (b, b + n - 1)


def sr(b, n=1):
    return "s%d" % b if n == 1 else "s[%d:%d]" % (b, b + n - 1)


def srd(a, d, base, size):
    a("s_mov_b32 s%d, s%d" % (d, base))
    a("s_and_b32 s%d, s%d, 0xffff" % (d + 1, base + 1))
    a("s_mov_b32 s%d, 0x%x" % (d + 2, size))
    a("s_mov_b32 s%d, 0x20000" % (d + 3))


def srd_off(a, d, base, off, size):
    a("s_add_u32 s%d, s%d, 0x%x" % (d, base, off))
    a("s_addc_u32 s%d, s%d, 0" % (d + 1, base + 1))
    a("s_and_b32 s%d, s%d, 0xffff" % (d + 1, d + 1))
    a("s_mov_b32 s%d, 0x%x" % (d + 2, size))
    a("s_mov_b32 s%d, 0x20000" % (d + 3))


def kernel_header(a, name):
    a.raw(".globl %s" % name)
    a.raw(".p2align 8")
    a.raw(".type %s,@function" % name)
    a.label(name)


def kernel_desc(name, vgprs, sgprs=96):
    acc = (vgprs + 3) // 4 * 4
    return """.amdhsa_kernel %s
  .amdhsa_next_free_vgpr %d
  .amdhsa_next_free_sgpr %d
  .amdhsa_accum_offset %d
  .amdhsa_group_segment_fixed_size 0
  .amdhsa_kernarg_size 72
  .amdhsa_user_sgpr_count 2
  .amdhsa_user_sgpr_kernarg_segment_ptr 1
  .amdhsa_system_sgpr_workgroup_id_x 1
.end_amdhsa_kernel
""" % (name, vgprs, sgprs, acc)


def wave_sum(a, v, tmp):
    for off in (0x041F, 0x081F, 0x101F, 0x201F, 0x401F):
        a("ds_swizzle_b32 v%d, v%d offset:0x%04x" % (tmp, v, off))
        a("s_waitcnt lgkmcnt(0)")
        a("v_add_f32 v%d, v%d, v%d" % (v, v, tmp))
    a("s_nop 0")
    a("v_readlane_b32 s40, v%d, 0" % v)
    a("v_readlane_b32 s41, v%d, 32" % v)
    a("s_nop 1")
    a("v_mov_b32 v%d, s40" % v)
    a("v_add_f32 v%d, s41, v%d" % (v, v))


def bf16_round(a, v):
    a("v_cvt_pk_bf16_f32 v%d, v%d, v%d" % (v, v, v))
    a("v_lshlrev_b32 v%d, 16, v%d" % (v, v))


def gen_ln(a, name):
    kernel_header(a, name)
    end = a.newlabel("ln_end")
    a("s_cmp_ge_u32 s2, 512")
    a("s_cbranch_scc1 %s" % end)
    a("s_load_dwordx2 s[4:5], s[0:1], %d" % KA_X)
    a("s_load_dwordx2 s[6:7], s[0:1], %d" % KA_WS)
    a("v_lshrrev_b32 v1, 6, v0")
    a("v_and_b32 v2, 63, v0")
    a("s_lshl_b32 s3, s2, 2")
    a("v_add_u32 v1, s3, v1")
    a("v_mul_u32_u24 v3, 1280, v1")
    a("v_mul_u32_u24 v4, 20, v2")
    a("v_add_u32 v3, v3, v4")
    a("s_waitcnt lgkmcnt(0)")
    srd(a, 8, 4, XN_SZ)
    srd_off(a, 12, 6, XN_OFF, XN_SZ)
    a("buffer_load_dwordx4 v[8:11], v3, s[8:11], 0 offen")
    a("buffer_load_dword v12, v3, s[8:11], 0 offen offset:16")
    a("s_waitcnt vmcnt(0)")
    for i in range(5):
        a("v_lshlrev_b32 v%d, 16, v%d" % (16 + 2 * i, 8 + i))
        a("v_and_b32 v%d, 0xffff0000, v%d" % (17 + 2 * i, 8 + i))
    a("v_add_f32 v30, v16, v17")
    for i in range(2, 10):
        a("v_add_f32 v30, v30, v%d" % (16 + i))
    wave_sum(a, 30, 31)
    a("v_mul_f32 v30, 0x3acccccd, v30")
    a("v_sub_f32 v32, v16, v30")
    a("v_mul_f32 v33, v32, v32")
    for i in range(1, 10):
        a("v_sub_f32 v32, v%d, v30" % (16 + i))
        a("v_fmac_f32 v33, v32, v32")
    wave_sum(a, 33, 31)
    a("v_mul_f32 v33, 0x3acccccd, v33")
    bf16_round(a, 33)
    a("v_add_f32 v33, 0x3727c5ac, v33")
    bf16_round(a, 33)
    a("v_sqrt_f32 v33, v33")
    a("s_nop 0")
    bf16_round(a, 33)
    bf16_round(a, 30)
    a("v_rcp_f32 v34, v33")
    a("s_nop 0")
    a("v_fma_f32 v35, -v33, v34, 1.0")
    a("v_fma_f32 v34, v35, v34, v34")
    for i in range(10):
        a("v_sub_f32 v%d, v%d, v30" % (16 + i, 16 + i))
    for i in range(5):
        a("v_cvt_pk_bf16_f32 v%d, v%d, v%d" % (8 + i, 16 + 2 * i, 17 + 2 * i))
    for i in range(5):
        a("v_lshlrev_b32 v%d, 16, v%d" % (16 + 2 * i, 8 + i))
        a("v_and_b32 v%d, 0xffff0000, v%d" % (17 + 2 * i, 8 + i))
    for i in range(10):
        a("v_mul_f32 v36, v%d, v34" % (16 + i))
        a("v_fma_f32 v37, -v36, v33, v%d" % (16 + i))
        a("v_fma_f32 v%d, v37, v34, v36" % (16 + i))
    for i in range(5):
        a("v_cvt_pk_bf16_f32 v%d, v%d, v%d" % (8 + i, 16 + 2 * i, 17 + 2 * i))
    a("buffer_store_dwordx4 v[8:11], v3, s[12:15], 0 offen")
    a("buffer_store_dword v12, v3, s[12:15], 0 offen offset:16")
    a.label(end)
    a("s_endpgm")


class GemmCfg:
    pass


def gemm_stream(a, c, chunks):
    NW = c.nwaves
    S = c.stages
    stage = c.a_bytes + c.w_bytes
    ndma = c.a_dma + c.w_dma
    n = len(chunks)

    def issue(k):
        if 'nodma' in EXP:
            return
        ph = chunks[k]
        buf = k % S
        for e in range(c.a_dma):
            a("s_add_u32 m0, s%d, 0x%x" % (c.s_m0a, buf * stage + e * NW * 1024))
            a("s_nop 0")
            a("buffer_load_dwordx4 v%d, %s, s%d offen lds" % (ph.v_adma, sr(ph.a_srd, 4), ph.s_aoff + e))
            a("s_add_u32 s%d, s%d, 128" % (ph.s_aoff + e, ph.s_aoff + e))
        for e in range(c.w_dma):
            a("s_add_u32 m0, s%d, 0x%x" % (c.s_m0w, buf * stage + c.a_bytes + e * 1024))
            a("s_nop 0")
            a("buffer_load_dwordx4 v%d, %s, s%d offen lds" % (c.v_wdma, sr(ph.w_srd, 4), ph.s_woff + e))
            a("s_add_u32 s%d, s%d, s%d" % (ph.s_woff + e, ph.s_woff + e, c.s_wstep))

    def read_frags(buf, j, set_):
        for tm in range(c.TM):
            a("ds_read_b128 %s, v%d offset:%d" % (
                vr(c.AF[set_] + tm * 4, 4), c.v_ard[j] + buf * c.rd_buf_stride, tm * 32 * 128))
        for tn in range(c.TN):
            for half in range(2):
                a("ds_read_b64_tr_b16 %s, v%d offset:%d" % (
                    vr(c.BF[set_] + tn * 4 + half * 2, 2), c.v_brd[tn] + buf * c.rd_buf_stride,
                    c.a_bytes + j * 8 * c.wrow + half * 4 * c.wrow))

    nrd = c.TM + 2 * c.TN
    seen = set()

    def compute(k):
        if 'nocomp' in EXP:
            return
        buf = k % S
        ph = chunks[k]
        read_frags(buf, 0, 0)
        for j in range(4):
            if j + 1 < 4:
                read_frags(buf, j + 1, (j + 1) & 1)
                a("s_waitcnt lgkmcnt(%d)" % nrd)
            else:
                a("s_waitcnt lgkmcnt(0)")
            for tm in range(c.TM):
                for tn in range(c.TN):
                    acc = vr(ph.ACC + (tm * c.TN + tn) * 16, 16)
                    af = vr(c.AF[j & 1] + tm * 4, 4)
                    bf = vr(c.BF[j & 1] + tn * 4, 4)
                    srcc = acc if ph.ACC in seen else "0"
                    if c.vtile:
                        a("v_mfma_f32_32x32x16_bf16 %s, %s, %s, %s" % (acc, af, bf, srcc))
                    else:
                        a("v_mfma_f32_32x32x16_bf16 %s, %s, %s, %s" % (acc, bf, af, srcc))
            seen.add(ph.ACC)

    for b in range(1, S):
        for r_ in list(c.v_ard) + list(c.v_brd):
            a("v_add_u32 v%d, 0x%x, v%d" % (r_ + b * c.rd_buf_stride, b * stage, r_))
    for k in range(min(S - 1, n)):
        issue(k)
    a("s_waitcnt vmcnt(%d)" % (ndma * (min(S - 1, n) - 1)))
    a("s_barrier")
    for k in range(n):
        if k + S - 1 < n:
            issue(k + S - 1)
        compute(k)
        if k + 1 < n:
            last = min(k + S - 1, n - 1)
            a("s_waitcnt vmcnt(%d)" % (ndma * (last - (k + 1))))
            a("s_barrier")


class Phase:
    pass


def gen_gemm1(a, name, STAGES=3):
    kernel_header(a, name)
    end = a.newlabel("g1_end")
    a("s_cmp_ge_u32 s2, 216")
    a("s_cbranch_scc1 %s" % end)
    a("s_load_dwordx2 s[4:5], s[0:1], %d" % KA_WQKV)
    a("s_load_dwordx2 s[6:7], s[0:1], %d" % KA_W1)
    a("s_load_dwordx2 s[8:9], s[0:1], %d" % KA_WS)
    a("s_and_b32 s24, s2, 7")
    a("s_lshr_b32 s25, s2, 3")
    a("v_lshrrev_b32 v1, 6, v0")
    a("s_nop 0")
    a("v_readfirstlane_b32 s26, v1")
    a("v_and_b32 v2, 63, v0")
    a("s_waitcnt lgkmcnt(0)")
    srd_off(a, 12, 8, XN_OFF, XN_SZ)
    lw = a.newlabel("g1_w1")
    lw2 = a.newlabel("g1_wdone")
    a("s_cmp_ge_u32 s25, 15")
    a("s_cbranch_scc1 %s" % lw)
    srd(a, 16, 4, 640 * 3840)
    a("s_movk_i32 s27, 3840")
    a("s_lshl_b32 s28, s25, 8")
    a("s_branch %s" % lw2)
    a.label(lw)
    srd(a, 16, 6, 640 * 3072)
    a("s_movk_i32 s27, 3072")
    a("s_sub_u32 s28, s25, 15")
    a("s_lshl_b32 s28, s28, 8")
    a.label(lw2)
    a("s_lshr_b32 s29, s26, 1")
    a("s_and_b32 s30, s26, 1")
    a("v_and_b32 v3, 31, v2")
    a("v_lshrrev_b32 v4, 5, v2")
    a("s_lshl_b32 s31, s24, 8")
    a("s_lshl_b32 s32, s29, 6")
    a("s_add_u32 s31, s31, s32")
    a("v_add_u32 v5, s31, v3")
    a("v_lshrrev_b32 v8, 3, v2")
    a("v_lshrrev_b32 v9, 4, v2")
    a("s_and_b32 s33, s26, 1")
    a("s_lshl_b32 s33, s33, 2")
    a("v_add_u32 v9, s33, v9")
    a("v_and_b32 v10, 7, v2")
    a("v_xor_b32 v9, v9, v10")
    a("v_lshlrev_b32 v9, 4, v9")
    a("v_mul_u32_u24 v8, 1280, v8")
    a("v_add_u32 v8, v8, v9")
    a("s_lshl_b32 s34, s24, 8")
    a("s_lshl_b32 s35, s26, 3")
    a("s_add_u32 s34, s34, s35")
    a("s_mul_i32 s40, s34, 1280")
    for e in range(1, 4):
        a("s_add_u32 s%d, s40, %d" % (40 + e, e * 64 * 1280))
    a("s_lshl_b32 s36, s26, 10")
    a("v_lshrrev_b32 v9, 4, v2")
    a("v_and_b32 v10, 15, v2")
    a("v_lshlrev_b32 v11, 2, v9")
    a("v_xor_b32 v10, v10, v11")
    a("v_lshlrev_b32 v10, 4, v10")
    a("v_mul_lo_u32 v11, v9, s27")
    a("v_add3_u32 v9, v10, v11, s28")
    a("s_lshl_b32 s44, s26, 3")
    a("s_mul_i32 s44, s44, s27")
    a("s_lshl_b32 s45, s27, 2")
    a("s_add_u32 s45, s44, s45")
    a("s_lshl_b32 s46, s27, 6")
    a("s_lshl_b32 s37, s26, 11")
    a("v_add_u32 v10, s32, v3")
    a("v_bfe_u32 v11, v10, 1, 3")
    a("v_lshlrev_b32 v12, 2, v4")
    a("v_xor_b32 v11, v11, v12")
    a("v_lshlrev_b32 v10, 7, v10")
    for j in range(4):
        a("v_xor_b32 v12, %d, v11" % j)
        a("v_lshl_add_u32 v%d, v12, 4, v10" % (16 + j))
    a("v_bfe_u32 v10, v2, 2, 2")
    a("v_and_b32 v11, 3, v2")
    a("v_bfe_u32 v12, v2, 4, 1")
    a("v_lshl_add_u32 v13, v4, 5, v10")
    a("v_lshlrev_b32 v13, 8, v13")
    a("v_lshl_add_u32 v13, v12, 5, v13")
    a("v_lshl_add_u32 v13, v11, 3, v13")
    a("s_lshl_b32 s38, s30, 1")
    a("v_xor_b32 v14, s38, v10")
    a("v_lshl_add_u32 v14, v14, 6, v13")
    a("s_add_u32 s38, s38, 1")
    a("v_xor_b32 v15, s38, v10")
    a("v_lshl_add_u32 v15, v15, 6, v13")

    c = GemmCfg()
    c.nwaves = 8
    c.a_bytes = 256 * 128
    c.w_bytes = 64 * 256
    c.wrow = 256
    c.a_dma = 4
    c.w_dma = 2
    c.s_m0a = 36
    c.s_m0w = 37
    c.v_adma = 8
    c.v_wdma = 9
    c.a_srd = 12
    c.w_srd = 16
    c.s_aoff = 40
    c.s_woff = 44
    c.s_wstep = 46
    c.TM = 2
    c.TN = 2
    c.AF = (32, 40)
    c.BF = (48, 56)
    c.ACC = 64
    c.v_ard = None
    c.v_brd = (14, 15)
    c.s_cnt = 47
    c.rd_buf_stride = 6
    c.stages = STAGES
    ACC = c.ACC

    def run(vtile):
        c.vtile = vtile
        c.v_ard = [16, 17, 18, 19]
        ph = Phase()
        ph.a_srd, ph.w_srd, ph.v_adma, ph.s_aoff, ph.s_woff, ph.ACC = 12, 16, 8, 40, 44, 64
        gemm_stream(a, c, [ph] * 10)
        a("s_nop 15")

    lv = a.newlabel("g1_v")
    a("s_cmp_lt_u32 s25, 10")
    lq = a.newlabel("g1_q")
    a("s_cbranch_scc1 %s" % lq)
    a("s_cmp_lt_u32 s25, 15")
    a("s_cbranch_scc1 %s" % lv)
    a.label(lq)
    run(False)
    a("s_barrier")
    lnr = a.newlabel("g1_norelu")
    a("s_cmp_lt_u32 s25, 15")
    a("s_cbranch_scc1 %s" % lnr)
    for i in range(64):
        a("v_max_f32 v%d, 0, v%d" % (ACC + i, ACC + i))
    a.label(lnr)
    a("v_add_u32 v20, s32, v3")
    a("v_mul_u32_u24 v20, 264, v20")
    a("v_lshl_add_u32 v20, v4, 3, v20")
    a("s_lshl_b32 s41, s30, 7")
    a("v_add_u32 v20, s41, v20")
    for tm in range(2):
        for tn in range(2):
            base = ACC + (tm * 2 + tn) * 16
            for rg in range(4):
                a("v_cvt_pk_bf16_f32 v%d, v%d, v%d" % (base + rg * 4, base + rg * 4, base + rg * 4 + 1))
                a("v_cvt_pk_bf16_f32 v%d, v%d, v%d" % (base + rg * 4 + 1, base + rg * 4 + 2, base + rg * 4 + 3))
                a("ds_write_b64 v20, %s offset:%d" % (vr(base + rg * 4, 2), tm * 32 * 264 + tn * 64 + rg * 16))
    a("s_waitcnt lgkmcnt(0)")
    a("s_barrier")
    a("v_and_b32 v21, 31, v0")
    a("v_lshrrev_b32 v22, 5, v0")
    a("v_mul_u32_u24 v23, 264, v22")
    a("v_lshl_add_u32 v23, v21, 3, v23")
    for i in range(16):
        a("ds_read_b64 %s, v23 offset:%d" % (vr(64 + i * 2, 2), i * 16 * 264))
    lh = a.newlabel("g1_h")
    a("s_cmp_ge_u32 s25, 15")
    a("s_cbranch_scc1 %s" % lh)
    srd_off(a, 20, 8, QK_OFF, QK_SZ)
    a("s_lshl_b32 s39, s25, 7")
    a("v_lshl_add_u32 v24, v21, 2, s39")
    a("v_mul_u32_u24 v25, 0xcccd, v24")
    a("v_lshrrev_b32 v25, 20, v25")
    a("v_mul_u32_u24 v26, 20, v25")
    a("v_sub_u32 v26, v24, v26")
    a("s_mov_b32 s40, 81920")
    a("v_mul_lo_u32 v25, v25, s40")
    a("v_lshl_add_u32 v25, v26, 1, v25")
    a("s_lshl_b32 s41, s24, 8")
    a("v_add_u32 v26, s41, v22")
    a("v_mul_u32_u24 v26, 40, v26")
    a("v_add_u32 v25, v25, v26")
    a("s_waitcnt lgkmcnt(0)")
    for i in range(16):
        a("buffer_store_dwordx2 %s, v25, s[20:23], 0 offen offset:%d" % (vr(64 + i * 2, 2), (i % 4) * 640))
        if i % 4 == 3:
            a("v_add_u32 v25, 2560, v25")
    a("s_endpgm")
    a.label(lh)
    srd_off(a, 20, 8, H_OFF, H_SZ)
    a("s_sub_u32 s39, s25, 15")
    a("s_lshl_b32 s39, s39, 8")
    a("s_lshl_b32 s41, s24, 8")
    a("v_add_u32 v26, s41, v22")
    a("v_mul_u32_u24 v26, 3072, v26")
    a("v_lshl_add_u32 v26, v21, 3, v26")
    a("v_add_u32 v26, s39, v26")
    a("s_mov_b32 s40, 0")
    a("s_waitcnt lgkmcnt(0)")
    for i in range(16):
        a("buffer_store_dwordx2 %s, v26, s[20:23], s40 offen" % vr(64 + i * 2, 2))
        a("s_add_u32 s40, s40, %d" % (16 * 3072))
    a("s_endpgm")
    a.label(lv)
    run(True)
    a("s_barrier")
    a("s_lshl_b32 s41, s30, 6")
    a("v_add_u32 v20, s41, v3")
    a("v_mul_u32_u24 v20, 520, v20")
    a("v_lshl_add_u32 v20, v4, 3, v20")
    a("s_lshl_b32 s41, s29, 7")
    a("v_add_u32 v20, s41, v20")
    for tm in range(2):
        for tn in range(2):
            base = ACC + (tm * 2 + tn) * 16
            for rg in range(4):
                a("v_cvt_pk_bf16_f32 v%d, v%d, v%d" % (base + rg * 4, base + rg * 4, base + rg * 4 + 1))
                a("v_cvt_pk_bf16_f32 v%d, v%d, v%d" % (base + rg * 4 + 1, base + rg * 4 + 2, base + rg * 4 + 3))
                a("ds_write_b64 v20, %s offset:%d" % (vr(base + rg * 4, 2), tn * 32 * 520 + tm * 64 + rg * 16))
    a("s_waitcnt lgkmcnt(0)")
    a("s_barrier")
    a("v_and_b32 v21, 63, v0")
    a("v_lshrrev_b32 v22, 6, v0")
    a("v_mul_u32_u24 v23, 520, v22")
    a("v_lshl_add_u32 v23, v21, 3, v23")
    for i in range(16):
        a("ds_read_b64 %s, v23 offset:%d" % (vr(64 + i * 2, 2), i * 8 * 520))
    srd_off(a, 20, 8, VT_OFF, VT_SZ)
    a("s_sub_u32 s38, s25, 10")
    a("s_lshl_b32 s38, s38, 7")
    a("v_add_u32 v26, s38, v22")
    a("v_lshlrev_b32 v26, 12, v26")
    a("v_lshl_add_u32 v26, v21, 3, v26")
    a("s_lshl_b32 s39, s24, 9")
    a("v_add_u32 v26, s39, v26")
    a("s_mov_b32 s40, 0")
    a("s_waitcnt lgkmcnt(0)")
    for i in range(16):
        a("buffer_store_dwordx2 %s, v26, s[20:23], s40 offen" % vr(64 + i * 2, 2))
        a("s_add_u32 s40, s40, %d" % (8 * 4096))
    a.label(end)
    a("s_endpgm")


def gen_attn(a, name):
    kernel_header(a, name)
    end = a.newlabel("at_end")
    a("s_cmp_ge_u32 s2, 512")
    a("s_cbranch_scc1 %s" % end)
    a("s_load_dwordx2 s[8:9], s[0:1], %d" % KA_WS)
    a("v_lshrrev_b32 v1, 6, v0")
    a("s_nop 0")
    a("v_readfirstlane_b32 s26, v1")
    a("v_and_b32 v2, 63, v0")
    a("s_lshr_b32 s24, s2, 4")
    a("s_and_b32 s25, s2, 15")
    a("s_waitcnt lgkmcnt(0)")
    srd_off(a, 12, 8, QK_OFF, QK_SZ)
    srd_off(a, 16, 8, VT_OFF, VT_SZ)
    srd_off(a, 20, 8, O_OFF, O_SZ)
    a("v_and_b32 v3, 31, v2")
    a("v_lshrrev_b32 v4, 5, v2")
    a("v_lshlrev_b32 v5, 4, v2")
    a("s_lshl_b32 s27, s25, 7")
    a("s_mul_i32 s28, s24, 81920")
    a("s_mul_i32 s29, s27, 40")
    a("s_add_u32 s30, s28, s29")
    a("s_add_u32 s31, s30, %d" % (32 * 81920 - 256 * 40))
    for e in range(4):
        sk = a.newlabel("at_kd")
        if e == 3:
            a("s_cmp_ge_u32 s26, 3")
            a("s_cbranch_scc1 %s" % sk)
        a("s_lshl_b32 s33, s26, 10")
        a("s_add_u32 s33, s33, %d" % (e * 4096))
        a("s_mov_b32 m0, s33")
        a("s_add_u32 s34, s33, s31")
        a("buffer_load_dwordx4 v5, s[12:15], s34 offen lds")
        a.label(sk)
    a("s_lshl_b32 s33, s26, 10")
    a("s_add_u32 m0, s33, 15360")
    a("s_add_u32 s34, s33, s30")
    a("buffer_load_dwordx4 v5, s[12:15], s34 offen lds")
    sk = a.newlabel("at_qd")
    a("s_cmp_lg_u32 s26, 0")
    a("s_cbranch_scc1 %s" % sk)
    a("s_mov_b32 m0, %d" % (15360 + 4096))
    a("s_add_u32 s34, s30, 4096")
    a("buffer_load_dwordx4 v5, s[12:15], s34 offen lds")
    a.label(sk)
    a("s_mul_i32 s35, s24, 20")
    a("s_lshl_b32 s36, s27, 1")
    a("s_sub_u32 s36, s36, 512")
    for e in range(4):
        sk = a.newlabel("at_vd")
        if e == 3:
            a("s_cmp_ge_u32 s26, 3")
            a("s_cbranch_scc1 %s" % sk)
        a("s_lshl_b32 s33, s26, 10")
        a("s_add_u32 s33, s33, %d" % (e * 4096))
        a("v_add_u32 v6, s33, v5")
        a("v_mul_u32_u24 v7, 43691, v6")
        a("v_lshrrev_b32 v7, 25, v7")
        a("v_mul_u32_u24 v8, 768, v7")
        a("v_sub_u32 v8, v6, v8")
        a("v_add_u32 v7, s35, v7")
        a("v_lshl_add_u32 v8, v7, 12, v8")
        a("v_add_u32 v8, s36, v8")
        a("s_add_u32 m0, s33, 20480")
        a("s_nop 0")
        a("buffer_load_dwordx4 v8, s[16:19], 0 offen lds")
        a.label(sk)
    a("s_lshl_b32 s37, s25, 2")
    a("s_add_u32 s37, s37, s26")
    a("s_sub_u32 s29, 8, s37")
    a("s_cmp_lt_u32 s37, 8")
    a("s_cselect_b32 s29, s29, 0")
    SACC = 16
    for i in range(144):
        a("v_mov_b32 v%d, 0xf149f2ca" % (SACC + i))
    a("s_lshl_b32 s38, s26, 5")
    a("v_add_u32 v6, s38, v3")
    a("v_mul_u32_u24 v6, 40, v6")
    a("v_lshl_add_u32 v6, v4, 4, v6")
    a("v_add_u32 v7, 15360, v6")
    a("v_cmp_gt_u32 s[40:41], 20, v3")
    a("v_cmp_eq_u32 s[42:43], 20, v3")
    a("v_cndmask_b32 v8, 0, v3, s[40:41]")
    a("v_mul_u32_u24 v8, 768, v8")
    a("v_lshl_add_u32 v8, v4, 3, v8")
    a("s_lshl_b32 s39, s38, 1")
    a("v_add_u32 v8, s39, v8")
    a("v_add_u32 v8, 20480, v8")
    a("v_cmp_eq_u32 vcc, 0, v4")
    a("s_waitcnt vmcnt(0)")
    a("s_barrier")
    a("ds_read_b64 v[8+0:8+1], v7" .replace("8+0", "160").replace("8+1", "161"))
    a("ds_read_b64 v[162:163], v7 offset:8")
    a("ds_read_b64 v[164:165], v7 offset:32")
    a("v_mov_b32 v166, 0")
    a("v_mov_b32 v167, 0")
    KF = 168
    for t in range(9):
        a("ds_read_b64 %s, v6 offset:%d" % (vr(KF + t * 8, 2), t * 1280))
        a("ds_read_b64 %s, v6 offset:%d" % (vr(KF + t * 8 + 2, 2), t * 1280 + 8))
        a("ds_read_b64 %s, v6 offset:%d" % (vr(KF + t * 8 + 4, 2), t * 1280 + 32))
        a("v_mov_b32 v%d, 0" % (KF + t * 8 + 6))
        a("v_mov_b32 v%d, 0" % (KF + t * 8 + 7))
    a("s_waitcnt lgkmcnt(0)")
    a("v_cndmask_b32 v164, 0, v164, vcc")
    a("v_cndmask_b32 v165, 0, v165, vcc")
    for t in range(9):
        a("v_cndmask_b32 v%d, 0, v%d, vcc" % (KF + t * 8 + 4, KF + t * 8 + 4))
        a("v_cndmask_b32 v%d, 0, v%d, vcc" % (KF + t * 8 + 5, KF + t * 8 + 5))
    a("s_nop 1")
    for t in range(9):
        sk = a.newlabel("at_sskip")
        a("s_cmp_gt_u32 s29, %d" % t)
        a("s_cbranch_scc1 %s" % sk)
        acc = vr(SACC + t * 16, 16)
        a("v_mfma_f32_32x32x16_bf16 %s, %s, %s, 0" % (acc, vr(KF + t * 8, 4), vr(160, 4)))
        a("v_mfma_f32_32x32x16_bf16 %s, %s, %s, %s" % (acc, vr(KF + t * 8 + 4, 4), vr(164, 4), acc))
        a.label(sk)
    a("s_nop 7")
    for t in range(9):
        for q in range(4):
            a("ds_read_b64 %s, v8 offset:%d" % (vr(KF + t * 8 + q * 2, 2), t * 64 + q * 16))
    a("s_nop 3")
    a("v_lshlrev_b32 v242, 2, v4")
    a("v_mov_b32 v244, 0xf149f2ca")
    for r in range(16):
        b0 = 8 * (r >> 2) + (r & 3)
        a("v_add_u32 v243, %d, v242" % b0)
        a("v_cmp_le_u32 vcc, v243, v3")
        a("s_nop 1")
        a("v_cndmask_b32 v%d, v244, v%d, vcc" % (SACC + 8 * 16 + r, SACC + 8 * 16 + r))
        a("v_cndmask_b32 v%d, v%d, v244, vcc" % (SACC + r, SACC + r))
    a("v_max_f32 v245, v%d, v%d" % (SACC, SACC + 1))
    for i in range(2, 144, 2):
        a("v_max3_f32 v245, v245, v%d, v%d" % (SACC + i, SACC + i + 1))
    a("v_xor_b32 v246, 32, v2")
    a("v_lshlrev_b32 v246, 2, v246")
    a("ds_bpermute_b32 v247, v246, v245")
    a("s_waitcnt lgkmcnt(0)")
    a("v_max_f32 v245, v245, v247")
    import math
    c = (20 ** -0.5) * math.log2(math.e)
    a("s_mov_b32 s32, 0x%08x" % f32bits(c))
    a("v_mul_f32 v245, s32, v245")
    a("v_sub_f32 v245, 0, v245")
    for i in range(144):
        a("v_fma_f32 v%d, v%d, s32, v245" % (SACC + i, SACC + i))
        a("v_exp_f32 v%d, v%d" % (SACC + i, SACC + i))
    a("s_nop 0")
    for t in range(9):
        for i in range(8):
            a("v_cvt_pk_bf16_f32 v%d, v%d, v%d" % (SACC + t * 16 + i, SACC + t * 16 + i * 2, SACC + t * 16 + i * 2 + 1))
    a("v_mov_b32 v244, 0x3f803f80")
    a("s_nop 1")
    a("v_cndmask_b32 v243, 0, v244, s[42:43]")
    for t in range(9):
        for i in range(8):
            a("v_cndmask_b32 v%d, v243, v%d, s[40:41]" % (KF + t * 8 + i, KF + t * 8 + i))
    OACC = 240
    for i in range(16):
        a("v_mov_b32 v%d, 0" % (OACC + i))
    a("s_nop 1")
    for t in range(9):
        sk = a.newlabel("at_pskip")
        a("s_cmp_gt_u32 s29, %d" % t)
        a("s_cbranch_scc1 %s" % sk)
        acc = vr(OACC, 16)
        a("v_mfma_f32_32x32x16_bf16 %s, %s, %s, %s" % (acc, vr(KF + t * 8, 4), vr(SACC + t * 16, 4), acc))
        a("v_mfma_f32_32x32x16_bf16 %s, %s, %s, %s" % (acc, vr(KF + t * 8 + 4, 4), vr(SACC + t * 16 + 4, 4), acc))
        a.label(sk)
    a("s_nop 15")
    a("v_or_b32 v10, 32, v2")
    a("v_lshlrev_b32 v10, 2, v10")
    a("ds_bpermute_b32 v11, v10, v%d" % (OACC + 8))
    a("s_waitcnt lgkmcnt(0)")
    a("v_rcp_f32 v11, v11")
    a("s_nop 0")
    for i in range(12):
        a("v_mul_f32 v%d, v%d, v11" % (OACC + i, OACC + i))
    for rg in range(3):
        a("v_cvt_pk_bf16_f32 v%d, v%d, v%d" % (OACC + rg * 4, OACC + rg * 4, OACC + rg * 4 + 1))
        a("v_cvt_pk_bf16_f32 v%d, v%d, v%d" % (OACC + rg * 4 + 1, OACC + rg * 4 + 2, OACC + rg * 4 + 3))
    a("s_add_u32 s38, s38, s27")
    a("v_add_u32 v12, s38, v3")
    a("v_mul_u32_u24 v12, 1280, v12")
    a("v_lshl_add_u32 v12, v4, 3, v12")
    a("s_mul_i32 s28, s24, 40")
    a("v_add_u32 v12, s28, v12")
    a("buffer_store_dwordx2 %s, v12, s[20:23], 0 offen" % vr(OACC, 2))
    a("buffer_store_dwordx2 %s, v12, s[20:23], 0 offen offset:16" % vr(OACC + 4, 2))
    a("v_cmp_eq_u32 vcc, 0, v4")
    a("s_and_saveexec_b64 s[44:45], vcc")
    a("buffer_store_dwordx2 %s, v12, s[20:23], 0 offen offset:32" % vr(OACC + 8, 2))
    a.label(end)
    a("s_endpgm")


def f32bits(x):
    import struct
    return struct.unpack("<I", struct.pack("<f", x))[0]


def gen_gemm2(a, name, STAGES=3):
    kernel_header(a, name)
    end = a.newlabel("g2_end")
    a("s_cmp_ge_u32 s2, 160")
    a("s_cbranch_scc1 %s" % end)
    a("s_load_dwordx2 s[4:5], s[0:1], %d" % KA_WO)
    a("s_load_dwordx2 s[6:7], s[0:1], %d" % KA_W2)
    a("s_load_dwordx2 s[8:9], s[0:1], %d" % KA_WS)
    a("s_load_dwordx2 s[10:11], s[0:1], %d" % KA_X)
    a("s_load_dwordx2 s[50:51], s[0:1], %d" % KA_OUT)
    a("s_and_b32 s24, s2, 15")
    a("s_lshr_b32 s25, s2, 4")
    a("v_lshrrev_b32 v1, 6, v0")
    a("s_nop 0")
    a("v_readfirstlane_b32 s26, v1")
    a("v_and_b32 v2, 63, v0")
    a("s_waitcnt lgkmcnt(0)")
    a("s_lshr_b32 s29, s26, 1")
    a("s_and_b32 s30, s26, 1")
    a("v_and_b32 v3, 31, v2")
    a("v_lshrrev_b32 v4, 5, v2")
    a("s_lshl_b32 s31, s24, 7")
    a("s_lshl_b32 s32, s29, 6")
    a("s_add_u32 s31, s31, s32")
    a("v_add_u32 v5, s31, v3")
    a("v_lshrrev_b32 v8, 3, v2")
    a("v_lshrrev_b32 v9, 4, v2")
    a("s_and_b32 s33, s26, 1")
    a("s_lshl_b32 s33, s33, 2")
    a("v_add_u32 v9, s33, v9")
    a("v_and_b32 v10, 7, v2")
    a("v_xor_b32 v9, v9, v10")
    a("v_lshlrev_b32 v9, 4, v9")
    a("s_lshl_b32 s34, s24, 7")
    a("s_lshl_b32 s35, s26, 3")
    a("s_add_u32 s34, s34, s35")
    a("s_lshl_b32 s36, s26, 10")
    a("v_lshrrev_b32 v10, 3, v2")
    a("v_and_b32 v11, 7, v2")
    a("v_bfe_u32 v12, v2, 4, 1")
    a("v_lshlrev_b32 v12, 2, v12")
    a("v_xor_b32 v11, v11, v12")
    a("v_lshlrev_b32 v11, 4, v11")
    a("v_mul_u32_u24 v10, 1280, v10")
    a("s_lshl_b32 s28, s25, 7")
    a("v_add3_u32 v56, v10, v11, s28")
    a("s_lshl_b32 s37, s26, 11")
    a("s_mov_b32 s46, %d" % (64 * 1280))
    a("v_add_u32 v10, s32, v3")
    a("v_bfe_u32 v11, v10, 1, 3")
    a("v_lshlrev_b32 v12, 2, v4")
    a("v_xor_b32 v11, v11, v12")
    a("v_lshlrev_b32 v10, 7, v10")
    for j in range(4):
        a("v_xor_b32 v12, %d, v11" % j)
        a("v_lshl_add_u32 v%d, v12, 4, v10" % (16 + j))
    a("v_bfe_u32 v10, v2, 2, 2")
    a("v_and_b32 v11, 3, v2")
    a("v_bfe_u32 v12, v2, 4, 1")
    a("v_lshl_add_u32 v13, v4, 5, v10")
    a("v_lshlrev_b32 v13, 7, v13")
    a("v_lshl_add_u32 v13, v12, 5, v13")
    a("v_lshl_add_u32 v13, v11, 3, v13")
    a("v_bfe_u32 v14, v10, 1, 1")
    a("v_xor_b32 v14, s30, v14")
    a("v_lshl_add_u32 v14, v14, 6, v13")

    c = GemmCfg()
    c.nwaves = 4
    c.a_bytes = 128 * 128
    c.w_bytes = 64 * 128
    c.wrow = 128
    c.a_dma = 4
    c.w_dma = 2
    c.s_m0a = 36
    c.s_m0w = 37
    c.v_wdma = 56
    c.a_srd = 12
    c.w_srd = 16
    c.s_aoff = 40
    c.s_woff = 44
    c.s_wstep = 46
    c.TM = 2
    c.TN = 1
    c.AF = (32, 40)
    c.BF = (48, 52)
    c.v_ard = [16, 17, 18, 19]
    c.v_brd = (14,)
    c.s_cnt = 47
    c.rd_buf_stride = 6
    c.stages = STAGES
    c.vtile = False
    ACC1 = 64
    ACC2 = 96

    srd_off(a, 12, 8, O_OFF, O_SZ)
    srd(a, 16, 4, 640 * 1280)
    srd_off(a, 56, 8, H_OFF, H_SZ)
    srd(a, 60, 6, 1536 * 1280)
    p1 = Phase()
    p1.a_srd, p1.w_srd, p1.v_adma, p1.s_aoff, p1.s_woff, p1.ACC = 12, 16, 57, 40, 44, ACC1
    p2 = Phase()
    p2.a_srd, p2.w_srd, p2.v_adma, p2.s_aoff, p2.s_woff, p2.ACC = 56, 60, 58, 64, 68, ACC2
    for ph, a_stride in ((p1, 1280), (p2, 3072)):
        a("v_mul_u32_u24 v%d, %d, v8" % (ph.v_adma, a_stride))
        a("v_add_u32 v%d, v%d, v9" % (ph.v_adma, ph.v_adma))
        a("s_mul_i32 s%d, s34, %d" % (ph.s_aoff, a_stride))
        for e in range(1, 4):
            a("s_add_u32 s%d, s%d, %d" % (ph.s_aoff + e, ph.s_aoff, e * 32 * a_stride))
        a("s_mul_i32 s%d, s26, %d" % (ph.s_woff, 16 * 1280))
        a("s_add_u32 s%d, s%d, %d" % (ph.s_woff + 1, ph.s_woff, 8 * 1280))
    gemm_stream(a, c, [p1] * 10 + [p2] * 24)
    a("s_nop 15")
    srd(a, 20, 10, 2048 * 1280)
    srd(a, 40, 50, 2048 * 1280)
    a("v_mul_u32_u24 v20, 1280, v5")
    a("s_lshl_b32 s52, s25, 7")
    a("s_lshl_b32 s53, s30, 6")
    a("s_add_u32 s52, s52, s53")
    a("v_lshl_add_u32 v20, v4, 3, v20")
    a("v_add_u32 v20, s52, v20")
    a("v_add_u32 v21, 0x%x, v20" % (32 * 1280))
    XB = 32
    for tm in range(2):
        for rg in range(4):
            a("buffer_load_dwordx2 %s, v%d, s[20:23], 0 offen offset:%d" % (vr(XB + (tm * 4 + rg) * 2, 2), 20 + tm, rg * 16))
    a("s_mov_b32 s54, 0xbfb8aa3b")
    for tm in range(2):
        for rg in range(4):
            for i in range(4):
                s_ = ACC1 + tm * 16 + rg * 4 + i
                t_ = ACC2 + tm * 16 + rg * 4 + i
                bf16_round(a, s_)
                bf16_round(a, t_)
                a("v_mul_f32 v60, s54, v%d" % t_)
                a("v_exp_f32 v60, v60")
                a("s_nop 0")
                a("v_add_f32 v60, 1.0, v60")
                a("v_rcp_f32 v61, v60")
                a("s_nop 0")
                a("v_mul_f32 v%d, v%d, v61" % (t_, t_))
                bf16_round(a, t_)
                a("v_mul_f32 v%d, v%d, v%d" % (s_, s_, t_))
                bf16_round(a, s_)
    a("s_waitcnt vmcnt(0)")
    for tm in range(2):
        for rg in range(4):
            xb = XB + (tm * 4 + rg) * 2
            s0 = ACC1 + tm * 16 + rg * 4
            a("v_lshlrev_b32 v60, 16, v%d" % xb)
            a("v_and_b32 v61, 0xffff0000, v%d" % xb)
            a("v_add_f32 v%d, v60, v%d" % (s0, s0))
            a("v_add_f32 v%d, v61, v%d" % (s0 + 1, s0 + 1))
            a("v_lshlrev_b32 v60, 16, v%d" % (xb + 1))
            a("v_and_b32 v61, 0xffff0000, v%d" % (xb + 1))
            a("v_add_f32 v%d, v60, v%d" % (s0 + 2, s0 + 2))
            a("v_add_f32 v%d, v61, v%d" % (s0 + 3, s0 + 3))
            a("v_cvt_pk_bf16_f32 v%d, v%d, v%d" % (s0, s0, s0 + 1))
            a("v_cvt_pk_bf16_f32 v%d, v%d, v%d" % (s0 + 1, s0 + 2, s0 + 3))
            a("buffer_store_dwordx2 %s, v%d, s[40:43], 0 offen offset:%d" % (vr(s0, 2), 20 + tm, rg * 16))
    a.label(end)
    a("s_endpgm")


def main():
    hdr = open("cdna_kernels/%s.s.ref" % NAME).read().split("\n")
    head = [l for l in hdr if l.startswith(";") and "@launch" not in l]
    a = Asm()
    launches = [
        ("ln_kernel", 512, 256, 0),
        ("gemm1_kernel", 216, 512, 3*49152),
        ("attn_kernel", 512, 256, 35840),
        ("gemm2_kernel", 160, 256, 3*24576),
    ]
    out = "\n".join(head) + "\n"
    for k, g, b, l in launches:
        out += "; @launch kernel=%s grid=(%d,1,1) block=(%d,1,1) lds=%d\n" % (k, g, b, l)
    out += '.amdgcn_target "amdgcn-amd-amdhsa--gfx950"\n.text\n'
    gen_ln(a, "ln_kernel")
    gen_gemm1(a, "gemm1_kernel")
    gen_attn(a, "attn_kernel")
    gen_gemm2(a, "gemm2_kernel")
    out += a.text()
    out += '.section .rodata,"a"\n.p2align 6\n'
    out += kernel_desc("ln_kernel", 64)
    out += ".p2align 6\n" + kernel_desc("gemm1_kernel", 128)
    out += ".p2align 6\n" + kernel_desc("attn_kernel", 256)
    out += ".p2align 6\n" + kernel_desc("gemm2_kernel", 128)
    open(OUT, "w").write(out)


if __name__ == "__main__":
    main()
```

```python
import sys, os
EXP = os.environ.get('EXP', '')

NAME = "recurrent_scan__sliding_block__dense_activation_relu__prompt"
OUT = os.environ.get("OUT", "cdna_kernels/%s.s" % NAME)

XN_OFF = 0x0
QK_OFF = 0x400000
VT_OFF = 0xA00000
H_OFF = 0x1000000
O_OFF = 0x1800000
XN_SZ = 2048 * 1280
QK_SZ = 2048 * 2560
VT_SZ = 640 * 4096
H_SZ = 2048 * 3072
O_SZ = 2048 * 1280

KA_X, KA_WQKV, KA_WO, KA_BX, KA_W1, KA_W2, KA_OUT, KA_DBG, KA_WS = 0, 8, 16, 24, 32, 40, 48, 56, 64


class Asm:
    def __init__(self):
        self.lines = []
        self.uid = 0

    def __call__(self, s):
        for ln in s.strip("\n").split("\n"):
            self.lines.append("    " + ln.strip())

    def label(self, name):
        self.lines.append(name + ":")

    def newlabel(self, base):
        self.uid += 1
        return "L_%s_%d" % (base, self.uid)

    def raw(self, s):
        self.lines.append(s)

    def text(self):
        return "\n".join(self.lines) + "\n"


def vr(b, n=1):
    return "v%d" % b if n == 1 else "v[%d:%d]" % (b, b + n - 1)


def sr(b, n=1):
    return "s%d" % b if n == 1 else "s[%d:%d]" % (b, b + n - 1)


def srd(a, d, base, size):
    a("s_mov_b32 s%d, s%d" % (d, base))
    a("s_and_b32 s%d, s%d, 0xffff" % (d + 1, base + 1))
    a("s_mov_b32 s%d, 0x%x" % (d + 2, size))
    a("s_mov_b32 s%d, 0x20000" % (d + 3))


def srd_off(a, d, base, off, size):
    a("s_add_u32 s%d, s%d, 0x%x" % (d, base, off))
    a("s_addc_u32 s%d, s%d, 0" % (d + 1, base + 1))
    a("s_and_b32 s%d, s%d, 0xffff" % (d + 1, d + 1))
    a("s_mov_b32 s%d, 0x%x" % (d + 2, size))
    a("s_mov_b32 s%d, 0x20000" % (d + 3))


def kernel_header(a, name):
    a.raw(".globl %s" % name)
    a.raw(".p2align 8")
    a.raw(".type %s,@function" % name)
    a.label(name)


def kernel_desc(name, vgprs, sgprs=96):
    acc = (vgprs + 3) // 4 * 4
    return """.amdhsa_kernel %s
  .amdhsa_next_free_vgpr %d
  .amdhsa_next_free_sgpr %d
  .amdhsa_accum_offset %d
  .amdhsa_group_segment_fixed_size 0
  .amdhsa_kernarg_size 72
  .amdhsa_user_sgpr_count 2
  .amdhsa_user_sgpr_kernarg_segment_ptr 1
  .amdhsa_system_sgpr_workgroup_id_x 1
.end_amdhsa_kernel
""" % (name, vgprs, sgprs, acc)


def wave_sum(a, v, tmp):
    for off in (0x041F, 0x081F, 0x101F, 0x201F, 0x401F):
        a("ds_swizzle_b32 v%d, v%d offset:0x%04x" % (tmp, v, off))
        a("s_waitcnt lgkmcnt(0)")
        a("v_add_f32 v%d, v%d, v%d" % (v, v, tmp))
    a("s_nop 0")
    a("v_readlane_b32 s40, v%d, 0" % v)
    a("v_readlane_b32 s41, v%d, 32" % v)
    a("s_nop 1")
    a("v_mov_b32 v%d, s40" % v)
    a("v_add_f32 v%d, s41, v%d" % (v, v))


def bf16_round(a, v):
    a("v_cvt_pk_bf16_f32 v%d, v%d, v%d" % (v, v, v))
    a("v_lshlrev_b32 v%d, 16, v%d" % (v, v))


def gen_ln(a, name):
    kernel_header(a, name)
    end = a.newlabel("ln_end")
    a("s_cmp_ge_u32 s2, 512")
    a("s_cbranch_scc1 %s" % end)
    a("s_load_dwordx2 s[4:5], s[0:1], %d" % KA_X)
    a("s_load_dwordx2 s[6:7], s[0:1], %d" % KA_WS)
    a("v_lshrrev_b32 v1, 6, v0")
    a("v_and_b32 v2, 63, v0")
    a("s_lshl_b32 s3, s2, 2")
    a("v_add_u32 v1, s3, v1")
    a("v_mul_u32_u24 v3, 1280, v1")
    a("v_mul_u32_u24 v4, 20, v2")
    a("v_add_u32 v3, v3, v4")
    a("s_waitcnt lgkmcnt(0)")
    srd(a, 8, 4, XN_SZ)
    srd_off(a, 12, 6, XN_OFF, XN_SZ)
    a("buffer_load_dwordx4 v[8:11], v3, s[8:11], 0 offen")
    a("buffer_load_dword v12, v3, s[8:11], 0 offen offset:16")
    a("s_waitcnt vmcnt(0)")
    for i in range(5):
        a("v_lshlrev_b32 v%d, 16, v%d" % (16 + 2 * i, 8 + i))
        a("v_and_b32 v%d, 0xffff0000, v%d" % (17 + 2 * i, 8 + i))
    a("v_add_f32 v30, v16, v17")
    for i in range(2, 10):
        a("v_add_f32 v30, v30, v%d" % (16 + i))
    wave_sum(a, 30, 31)
    a("v_mul_f32 v30, 0x3acccccd, v30")
    a("v_sub_f32 v32, v16, v30")
    a("v_mul_f32 v33, v32, v32")
    for i in range(1, 10):
        a("v_sub_f32 v32, v%d, v30" % (16 + i))
        a("v_fmac_f32 v33, v32, v32")
    wave_sum(a, 33, 31)
    a("v_mul_f32 v33, 0x3acccccd, v33")
    bf16_round(a, 33)
    a("v_add_f32 v33, 0x3727c5ac, v33")
    bf16_round(a, 33)
    a("v_sqrt_f32 v33, v33")
    a("s_nop 0")
    bf16_round(a, 33)
    bf16_round(a, 30)
    a("v_rcp_f32 v34, v33")
    a("s_nop 0")
    a("v_fma_f32 v35, -v33, v34, 1.0")
    a("v_fma_f32 v34, v35, v34, v34")
    for i in range(10):
        a("v_sub_f32 v%d, v%d, v30" % (16 + i, 16 + i))
    for i in range(5):
        a("v_cvt_pk_bf16_f32 v%d, v%d, v%d" % (8 + i, 16 + 2 * i, 17 + 2 * i))
    for i in range(5):
        a("v_lshlrev_b32 v%d, 16, v%d" % (16 + 2 * i, 8 + i))
        a("v_and_b32 v%d, 0xffff0000, v%d" % (17 + 2 * i, 8 + i))
    for i in range(10):
        a("v_mul_f32 v36, v%d, v34" % (16 + i))
        a("v_fma_f32 v37, -v36, v33, v%d" % (16 + i))
        a("v_fma_f32 v%d, v37, v34, v36" % (16 + i))
    for i in range(5):
        a("v_cvt_pk_bf16_f32 v%d, v%d, v%d" % (8 + i, 16 + 2 * i, 17 + 2 * i))
    a("buffer_store_dwordx4 v[8:11], v3, s[12:15], 0 offen")
    a("buffer_store_dword v12, v3, s[12:15], 0 offen offset:16")
    a.label(end)
    a("s_endpgm")


class GemmCfg:
    pass


def gemm_stream(a, c, chunks):
    NW = c.nwaves
    S = c.stages
    stage = c.a_bytes + c.w_bytes
    ndma = c.a_dma + c.w_dma
    n = len(chunks)

    def issue(k):
        if 'nodma' in EXP:
            return
        ph = chunks[k]
        buf = k % S
        for e in range(c.a_dma):
            a("s_add_u32 m0, s%d, 0x%x" % (c.s_m0a, buf * stage + e * NW * 1024))
            a("s_nop 0")
            a("buffer_load_dwordx4 v%d, %s, s%d offen lds" % (ph.v_adma, sr(ph.a_srd, 4), ph.s_aoff + e))
            a("s_add_u32 s%d, s%d, 128" % (ph.s_aoff + e, ph.s_aoff + e))
        for e in range(c.w_dma):
            a("s_add_u32 m0, s%d, 0x%x" % (c.s_m0w, buf * stage + c.a_bytes + e * 1024))
            a("s_nop 0")
            a("buffer_load_dwordx4 v%d, %s, s%d offen lds" % (c.v_wdma, sr(ph.w_srd, 4), ph.s_woff + e))
            a("s_add_u32 s%d, s%d, s%d" % (ph.s_woff + e, ph.s_woff + e, c.s_wstep))

    def read_frags(buf, j, set_):
        for tm in range(c.TM):
            a("ds_read_b128 %s, v%d offset:%d" % (
                vr(c.AF[set_] + tm * 4, 4), c.v_ard[j] + buf * c.rd_buf_stride, tm * 32 * 128))
        for tn in range(c.TN):
            for half in range(2):
                a("ds_read_b64_tr_b16 %s, v%d offset:%d" % (
                    vr(c.BF[set_] + tn * 4 + half * 2, 2), c.v_brd[tn] + buf * c.rd_buf_stride,
                    c.a_bytes + j * 8 * c.wrow + half * 4 * c.wrow))

    nrd = c.TM + 2 * c.TN
    seen = set()

    def compute(k):
        if 'nocomp' in EXP:
            return
        buf = k % S
        ph = chunks[k]
        read_frags(buf, 0, 0)
        for j in range(4):
            if j + 1 < 4:
                read_frags(buf, j + 1, (j + 1) & 1)
                a("s_waitcnt lgkmcnt(%d)" % nrd)
            else:
                a("s_waitcnt lgkmcnt(0)")
            for tm in range(c.TM):
                for tn in range(c.TN):
                    acc = vr(ph.ACC + (tm * c.TN + tn) * 16, 16)
                    af = vr(c.AF[j & 1] + tm * 4, 4)
                    bf = vr(c.BF[j & 1] + tn * 4, 4)
                    srcc = acc if ph.ACC in seen else "0"
                    if c.vtile:
                        a("v_mfma_f32_32x32x16_bf16 %s, %s, %s, %s" % (acc, af, bf, srcc))
                    else:
                        a("v_mfma_f32_32x32x16_bf16 %s, %s, %s, %s" % (acc, bf, af, srcc))
            seen.add(ph.ACC)

    for b in range(1, S):
        for r_ in list(c.v_ard) + list(c.v_brd):
            a("v_add_u32 v%d, 0x%x, v%d" % (r_ + b * c.rd_buf_stride, b * stage, r_))
    for k in range(min(S - 1, n)):
        issue(k)
    a("s_waitcnt vmcnt(%d)" % (ndma * (min(S - 1, n) - 1)))
    a("s_barrier")
    for k in range(n):
        if k + S - 1 < n:
            issue(k + S - 1)
        compute(k)
        if k + 1 < n:
            last = min(k + S - 1, n - 1)
            a("s_waitcnt vmcnt(%d)" % (ndma * (last - (k + 1))))
            a("s_barrier")


class Phase:
    pass


def gen_gemm1(a, name, STAGES=3):
    kernel_header(a, name)
    end = a.newlabel("g1_end")
    a("s_cmp_ge_u32 s2, 216")
    a("s_cbranch_scc1 %s" % end)
    a("s_load_dwordx2 s[4:5], s[0:1], %d" % KA_WQKV)
    a("s_load_dwordx2 s[6:7], s[0:1], %d" % KA_W1)
    a("s_load_dwordx2 s[8:9], s[0:1], %d" % KA_WS)
    a("s_and_b32 s24, s2, 7")
    a("s_lshr_b32 s25, s2, 3")
    a("v_lshrrev_b32 v1, 6, v0")
    a("s_nop 0")
    a("v_readfirstlane_b32 s26, v1")
    a("v_and_b32 v2, 63, v0")
    a("s_waitcnt lgkmcnt(0)")
    srd_off(a, 12, 8, XN_OFF, XN_SZ)
    lw = a.newlabel("g1_w1")
    lw2 = a.newlabel("g1_wdone")
    a("s_cmp_ge_u32 s25, 15")
    a("s_cbranch_scc1 %s" % lw)
    srd(a, 16, 4, 640 * 3840)
    a("s_movk_i32 s27, 3840")
    a("s_lshl_b32 s28, s25, 8")
    a("s_branch %s" % lw2)
    a.label(lw)
    srd(a, 16, 6, 640 * 3072)
    a("s_movk_i32 s27, 3072")
    a("s_sub_u32 s28, s25, 15")
    a("s_lshl_b32 s28, s28, 8")
    a.label(lw2)
    a("s_lshr_b32 s29, s26, 1")
    a("s_and_b32 s30, s26, 1")
    a("v_and_b32 v3, 31, v2")
    a("v_lshrrev_b32 v4, 5, v2")
    a("s_lshl_b32 s31, s24, 8")
    a("s_lshl_b32 s32, s29, 6")
    a("s_add_u32 s31, s31, s32")
    a("v_add_u32 v5, s31, v3")
    a("v_lshrrev_b32 v8, 3, v2")
    a("v_lshrrev_b32 v9, 4, v2")
    a("s_and_b32 s33, s26, 1")
    a("s_lshl_b32 s33, s33, 2")
    a("v_add_u32 v9, s33, v9")
    a("v_and_b32 v10, 7, v2")
    a("v_xor_b32 v9, v9, v10")
    a("v_lshlrev_b32 v9, 4, v9")
    a("v_mul_u32_u24 v8, 1280, v8")
    a("v_add_u32 v8, v8, v9")
    a("s_lshl_b32 s34, s24, 8")
    a("s_lshl_b32 s35, s26, 3")
    a("s_add_u32 s34, s34, s35")
    a("s_mul_i32 s40, s34, 1280")
    for e in range(1, 4):
        a("s_add_u32 s%d, s40, %d" % (40 + e, e * 64 * 1280))
    a("s_lshl_b32 s36, s26, 10")
    a("v_lshrrev_b32 v9, 4, v2")
    a("v_and_b32 v10, 15, v2")
    a("v_lshlrev_b32 v11, 2, v9")
    a("v_xor_b32 v10, v10, v11")
    a("v_lshlrev_b32 v10, 4, v10")
    a("v_mul_lo_u32 v11, v9, s27")
    a("v_add3_u32 v9, v10, v11, s28")
    a("s_lshl_b32 s44, s26, 3")
    a("s_mul_i32 s44, s44, s27")
    a("s_lshl_b32 s45, s27, 2")
    a("s_add_u32 s45, s44, s45")
    a("s_lshl_b32 s46, s27, 6")
    a("s_lshl_b32 s37, s26, 11")
    a("v_add_u32 v10, s32, v3")
    a("v_bfe_u32 v11, v10, 1, 3")
    a("v_lshlrev_b32 v12, 2, v4")
    a("v_xor_b32 v11, v11, v12")
    a("v_lshlrev_b32 v10, 7, v10")
    for j in range(4):
        a("v_xor_b32 v12, %d, v11" % j)
        a("v_lshl_add_u32 v%d, v12, 4, v10" % (16 + j))
    a("v_bfe_u32 v10, v2, 2, 2")
    a("v_and_b32 v11, 3, v2")
    a("v_bfe_u32 v12, v2, 4, 1")
    a("v_lshl_add_u32 v13, v4, 5, v10")
    a("v_lshlrev_b32 v13, 8, v13")
    a("v_lshl_add_u32 v13, v12, 5, v13")
    a("v_lshl_add_u32 v13, v11, 3, v13")
    a("s_lshl_b32 s38, s30, 1")
    a("v_xor_b32 v14, s38, v10")
    a("v_lshl_add_u32 v14, v14, 6, v13")
    a("s_add_u32 s38, s38, 1")
    a("v_xor_b32 v15, s38, v10")
    a("v_lshl_add_u32 v15, v15, 6, v13")

    c = GemmCfg()
    c.nwaves = 8
    c.a_bytes = 256 * 128
    c.w_bytes = 64 * 256
    c.wrow = 256
    c.a_dma = 4
    c.w_dma = 2
    c.s_m0a = 36
    c.s_m0w = 37
    c.v_adma = 8
    c.v_wdma = 9
    c.a_srd = 12
    c.w_srd = 16
    c.s_aoff = 40
    c.s_woff = 44
    c.s_wstep = 46
    c.TM = 2
    c.TN = 2
    c.AF = (32, 40)
    c.BF = (48, 56)
    c.ACC = 64
    c.v_ard = None
    c.v_brd = (14, 15)
    c.s_cnt = 47
    c.rd_buf_stride = 6
    c.stages = STAGES
    ACC = c.ACC

    def run(vtile):
        c.vtile = vtile
        c.v_ard = [16, 17, 18, 19]
        ph = Phase()
        ph.a_srd, ph.w_srd, ph.v_adma, ph.s_aoff, ph.s_woff, ph.ACC = 12, 16, 8, 40, 44, 64
        gemm_stream(a, c, [ph] * 10)
        a("s_nop 15")

    lv = a.newlabel("g1_v")
    a("s_cmp_lt_u32 s25, 10")
    lq = a.newlabel("g1_q")
    a("s_cbranch_scc1 %s" % lq)
    a("s_cmp_lt_u32 s25, 15")
    a("s_cbranch_scc1 %s" % lv)
    a.label(lq)
    run(False)
    a("s_barrier")
    lnr = a.newlabel("g1_norelu")
    a("s_cmp_lt_u32 s25, 15")
    a("s_cbranch_scc1 %s" % lnr)
    for i in range(64):
        a("v_max_f32 v%d, 0, v%d" % (ACC + i, ACC + i))
    a.label(lnr)
    a("v_add_u32 v20, s32, v3")
    a("v_mul_u32_u24 v20, 264, v20")
    a("v_lshl_add_u32 v20, v4, 3, v20")
    a("s_lshl_b32 s41, s30, 7")
    a("v_add_u32 v20, s41, v20")
    for tm in range(2):
        for tn in range(2):
            base = ACC + (tm * 2 + tn) * 16
            for rg in range(4):
                a("v_cvt_pk_bf16_f32 v%d, v%d, v%d" % (base + rg * 4, base + rg * 4, base + rg * 4 + 1))
                a("v_cvt_pk_bf16_f32 v%d, v%d, v%d" % (base + rg * 4 + 1, base + rg * 4 + 2, base + rg * 4 + 3))
                a("ds_write_b64 v20, %s offset:%d" % (vr(base + rg * 4, 2), tm * 32 * 264 + tn * 64 + rg * 16))
    a("s_waitcnt lgkmcnt(0)")
    a("s_barrier")
    a("v_and_b32 v21, 31, v0")
    a("v_lshrrev_b32 v22, 5, v0")
    a("v_mul_u32_u24 v23, 264, v22")
    a("v_lshl_add_u32 v23, v21, 3, v23")
    for i in range(16):
        a("ds_read_b64 %s, v23 offset:%d" % (vr(64 + i * 2, 2), i * 16 * 264))
    lh = a.newlabel("g1_h")
    a("s_cmp_ge_u32 s25, 15")
    a("s_cbranch_scc1 %s" % lh)
    srd_off(a, 20, 8, QK_OFF, QK_SZ)
    a("s_lshl_b32 s39, s25, 7")
    a("v_lshl_add_u32 v24, v21, 2, s39")
    a("v_mul_u32_u24 v25, 0xcccd, v24")
    a("v_lshrrev_b32 v25, 20, v25")
    a("v_mul_u32_u24 v26, 20, v25")
    a("v_sub_u32 v26, v24, v26")
    a("s_mov_b32 s40, 81920")
    a("v_mul_lo_u32 v25, v25, s40")
    a("v_lshl_add_u32 v25, v26, 1, v25")
    a("s_lshl_b32 s41, s24, 8")
    a("v_add_u32 v26, s41, v22")
    a("v_mul_u32_u24 v26, 40, v26")
    a("v_add_u32 v25, v25, v26")
    a("s_waitcnt lgkmcnt(0)")
    for i in range(16):
        a("buffer_store_dwordx2 %s, v25, s[20:23], 0 offen offset:%d" % (vr(64 + i * 2, 2), (i % 4) * 640))
        if i % 4 == 3:
            a("v_add_u32 v25, 2560, v25")
    a("s_endpgm")
    a.label(lh)
    srd_off(a, 20, 8, H_OFF, H_SZ)
    a("s_sub_u32 s39, s25, 15")
    a("s_lshl_b32 s39, s39, 8")
    a("s_lshl_b32 s41, s24, 8")
    a("v_add_u32 v26, s41, v22")
    a("v_mul_u32_u24 v26, 3072, v26")
    a("v_lshl_add_u32 v26, v21, 3, v26")
    a("v_add_u32 v26, s39, v26")
    a("s_mov_b32 s40, 0")
    a("s_waitcnt lgkmcnt(0)")
    for i in range(16):
        a("buffer_store_dwordx2 %s, v26, s[20:23], s40 offen" % vr(64 + i * 2, 2))
        a("s_add_u32 s40, s40, %d" % (16 * 3072))
    a("s_endpgm")
    a.label(lv)
    run(True)
    a("s_barrier")
    a("s_lshl_b32 s41, s30, 6")
    a("v_add_u32 v20, s41, v3")
    a("v_mul_u32_u24 v20, 520, v20")
    a("v_lshl_add_u32 v20, v4, 3, v20")
    a("s_lshl_b32 s41, s29, 7")
    a("v_add_u32 v20, s41, v20")
    for tm in range(2):
        for tn in range(2):
            base = ACC + (tm * 2 + tn) * 16
            for rg in range(4):
                a("v_cvt_pk_bf16_f32 v%d, v%d, v%d" % (base + rg * 4, base + rg * 4, base + rg * 4 + 1))
                a("v_cvt_pk_bf16_f32 v%d, v%d, v%d" % (base + rg * 4 + 1, base + rg * 4 + 2, base + rg * 4 + 3))
                a("ds_write_b64 v20, %s offset:%d" % (vr(base + rg * 4, 2), tn * 32 * 520 + tm * 64 + rg * 16))
    a("s_waitcnt lgkmcnt(0)")
    a("s_barrier")
    a("v_and_b32 v21, 63, v0")
    a("v_lshrrev_b32 v22, 6, v0")
    a("v_mul_u32_u24 v23, 520, v22")
    a("v_lshl_add_u32 v23, v21, 3, v23")
    for i in range(16):
        a("ds_read_b64 %s, v23 offset:%d" % (vr(64 + i * 2, 2), i * 8 * 520))
    srd_off(a, 20, 8, VT_OFF, VT_SZ)
    a("s_sub_u32 s38, s25, 10")
    a("s_lshl_b32 s38, s38, 7")
    a("v_add_u32 v26, s38, v22")
    a("v_lshlrev_b32 v26, 12, v26")
    a("v_lshl_add_u32 v26, v21, 3, v26")
    a("s_lshl_b32 s39, s24, 9")
    a("v_add_u32 v26, s39, v26")
    a("s_mov_b32 s40, 0")
    a("s_waitcnt lgkmcnt(0)")
    for i in range(16):
        a("buffer_store_dwordx2 %s, v26, s[20:23], s40 offen" % vr(64 + i * 2, 2))
        a("s_add_u32 s40, s40, %d" % (8 * 4096))
    a.label(end)
    a("s_endpgm")


def gen_attn(a, name):
    kernel_header(a, name)
    end = a.newlabel("at_end")
    a("s_cmp_ge_u32 s2, 512")
    a("s_cbranch_scc1 %s" % end)
    a("s_load_dwordx2 s[8:9], s[0:1], %d" % KA_WS)
    a("v_lshrrev_b32 v1, 6, v0")
    a("s_nop 0")
    a("v_readfirstlane_b32 s26, v1")
    a("v_and_b32 v2, 63, v0")
    a("s_lshr_b32 s24, s2, 4")
    a("s_and_b32 s25, s2, 15")
    a("s_waitcnt lgkmcnt(0)")
    srd_off(a, 12, 8, QK_OFF, QK_SZ)
    srd_off(a, 16, 8, VT_OFF, VT_SZ)
    srd_off(a, 20, 8, O_OFF, O_SZ)
    a("v_and_b32 v3, 31, v2")
    a("v_lshrrev_b32 v4, 5, v2")
    a("v_lshlrev_b32 v5, 4, v2")
    a("s_lshl_b32 s27, s25, 7")
    a("s_mul_i32 s28, s24, 81920")
    a("s_mul_i32 s29, s27, 40")
    a("s_add_u32 s30, s28, s29")
    a("s_add_u32 s31, s30, %d" % (32 * 81920 - 256 * 40))
    for e in range(4):
        sk = a.newlabel("at_kd")
        if e == 3:
            a("s_cmp_ge_u32 s26, 3")
            a("s_cbranch_scc1 %s" % sk)
        a("s_lshl_b32 s33, s26, 10")
        a("s_add_u32 s33, s33, %d" % (e * 4096))
        a("s_mov_b32 m0, s33")
        a("s_add_u32 s34, s33, s31")
        a("buffer_load_dwordx4 v5, s[12:15], s34 offen lds")
        a.label(sk)
    a("s_lshl_b32 s33, s26, 10")
    a("s_add_u32 m0, s33, 15360")
    a("s_add_u32 s34, s33, s30")
    a("buffer_load_dwordx4 v5, s[12:15], s34 offen lds")
    sk = a.newlabel("at_qd")
    a("s_cmp_lg_u32 s26, 0")
    a("s_cbranch_scc1 %s" % sk)
    a("s_mov_b32 m0, %d" % (15360 + 4096))
    a("s_add_u32 s34, s30, 4096")
    a("buffer_load_dwordx4 v5, s[12:15], s34 offen lds")
    a.label(sk)
    a("s_mul_i32 s35, s24, 20")
    a("s_lshl_b32 s36, s27, 1")
    a("s_sub_u32 s36, s36, 512")
    for e in range(4):
        sk = a.newlabel("at_vd")
        if e == 3:
            a("s_cmp_ge_u32 s26, 3")
            a("s_cbranch_scc1 %s" % sk)
        a("s_lshl_b32 s33, s26, 10")
        a("s_add_u32 s33, s33, %d" % (e * 4096))
        a("v_add_u32 v6, s33, v5")
        a("v_mul_u32_u24 v7, 43691, v6")
        a("v_lshrrev_b32 v7, 25, v7")
        a("v_mul_u32_u24 v8, 768, v7")
        a("v_sub_u32 v8, v6, v8")
        a("v_add_u32 v7, s35, v7")
        a("v_lshl_add_u32 v8, v7, 12, v8")
        a("v_add_u32 v8, s36, v8")
        a("s_add_u32 m0, s33, 20480")
        a("s_nop 0")
        a("buffer_load_dwordx4 v8, s[16:19], 0 offen lds")
        a.label(sk)
    a("s_lshl_b32 s37, s25, 2")
    a("s_add_u32 s37, s37, s26")
    a("s_sub_u32 s29, 8, s37")
    a("s_cmp_lt_u32 s37, 8")
    a("s_cselect_b32 s29, s29, 0")
    SACC = 16
    for i in range(144):
        a("v_mov_b32 v%d, 0xf149f2ca" % (SACC + i))
    a("s_lshl_b32 s38, s26, 5")
    a("v_add_u32 v6, s38, v3")
    a("v_mul_u32_u24 v6, 40, v6")
    a("v_lshl_add_u32 v6, v4, 4, v6")
    a("v_add_u32 v7, 15360, v6")
    a("v_cmp_gt_u32 s[40:41], 20, v3")
    a("v_cmp_eq_u32 s[42:43], 20, v3")
    a("v_cndmask_b32 v8, 0, v3, s[40:41]")
    a("v_mul_u32_u24 v8, 768, v8")
    a("v_lshl_add_u32 v8, v4, 3, v8")
    a("s_lshl_b32 s39, s38, 1")
    a("v_add_u32 v8, s39, v8")
    a("v_add_u32 v8, 20480, v8")
    a("v_cmp_eq_u32 vcc, 0, v4")
    a("s_waitcnt vmcnt(0)")
    a("s_barrier")
    a("ds_read_b64 v[8+0:8+1], v7" .replace("8+0", "160").replace("8+1", "161"))
    a("ds_read_b64 v[162:163], v7 offset:8")
    a("ds_read_b64 v[164:165], v7 offset:32")
    a("v_mov_b32 v166, 0")
    a("v_mov_b32 v167, 0")
    KF = 168
    for t in range(9):
        a("ds_read_b64 %s, v6 offset:%d" % (vr(KF + t * 8, 2), t * 1280))
        a("ds_read_b64 %s, v6 offset:%d" % (vr(KF + t * 8 + 2, 2), t * 1280 + 8))
        a("ds_read_b64 %s, v6 offset:%d" % (vr(KF + t * 8 + 4, 2), t * 1280 + 32))
        a("v_mov_b32 v%d, 0" % (KF + t * 8 + 6))
        a("v_mov_b32 v%d, 0" % (KF + t * 8 + 7))
    a("s_waitcnt lgkmcnt(0)")
    a("v_cndmask_b32 v164, 0, v164, vcc")
    a("v_cndmask_b32 v165, 0, v165, vcc")
    for t in range(9):
        a("v_cndmask_b32 v%d, 0, v%d, vcc" % (KF + t * 8 + 4, KF + t * 8 + 4))
        a("v_cndmask_b32 v%d, 0, v%d, vcc" % (KF + t * 8 + 5, KF + t * 8 + 5))
    a("s_nop 1")
    for t in range(9):
        sk = a.newlabel("at_sskip")
        a("s_cmp_gt_u32 s29, %d" % t)
        a("s_cbranch_scc1 %s" % sk)
        acc = vr(SACC + t * 16, 16)
        a("v_mfma_f32_32x32x16_bf16 %s, %s, %s, 0" % (acc, vr(KF + t * 8, 4), vr(160, 4)))
        a("v_mfma_f32_32x32x16_bf16 %s, %s, %s, %s" % (acc, vr(KF + t * 8 + 4, 4), vr(164, 4), acc))
        a.label(sk)
    a("s_nop 7")
    for t in range(9):
        for q in range(4):
            a("ds_read_b64 %s, v8 offset:%d" % (vr(KF + t * 8 + q * 2, 2), t * 64 + q * 16))
    a("s_nop 3")
    a("v_lshlrev_b32 v242, 2, v4")
    a("v_mov_b32 v244, 0xf149f2ca")
    for r in range(16):
        b0 = 8 * (r >> 2) + (r & 3)
        a("v_add_u32 v243, %d, v242" % b0)
        a("v_cmp_le_u32 vcc, v243, v3")
        a("s_nop 1")
        a("v_cndmask_b32 v%d, v244, v%d, vcc" % (SACC + 8 * 16 + r, SACC + 8 * 16 + r))
        a("v_cndmask_b32 v%d, v%d, v244, vcc" % (SACC + r, SACC + r))
    a("v_max_f32 v245, v%d, v%d" % (SACC, SACC + 1))
    for i in range(2, 144, 2):
        a("v_max3_f32 v245, v245, v%d, v%d" % (SACC + i, SACC + i + 1))
    a("v_xor_b32 v246, 32, v2")
    a("v_lshlrev_b32 v246, 2, v246")
    a("ds_bpermute_b32 v247, v246, v245")
    a("s_waitcnt lgkmcnt(0)")
    a("v_max_f32 v245, v245, v247")
    import math
    c = (20 ** -0.5) * math.log2(math.e)
    a("s_mov_b32 s32, 0x%08x" % f32bits(c))
    a("v_mul_f32 v245, s32, v245")
    a("v_sub_f32 v245, 0, v245")
    for i in range(144):
        a("v_fma_f32 v%d, v%d, s32, v245" % (SACC + i, SACC + i))
        a("v_exp_f32 v%d, v%d" % (SACC + i, SACC + i))
    a("s_nop 0")
    for t in range(9):
        for i in range(8):
            a("v_cvt_pk_bf16_f32 v%d, v%d, v%d" % (SACC + t * 16 + i, SACC + t * 16 + i * 2, SACC + t * 16 + i * 2 + 1))
    a("v_mov_b32 v244, 0x3f803f80")
    a("s_nop 1")
    a("v_cndmask_b32 v243, 0, v244, s[42:43]")
    for t in range(9):
        for i in range(8):
            a("v_cndmask_b32 v%d, v243, v%d, s[40:41]" % (KF + t * 8 + i, KF + t * 8 + i))
    OACC = 240
    for i in range(16):
        a("v_mov_b32 v%d, 0" % (OACC + i))
    a("s_nop 1")
    for t in range(9):
        sk = a.newlabel("at_pskip")
        a("s_cmp_gt_u32 s29, %d" % t)
        a("s_cbranch_scc1 %s" % sk)
        acc = vr(OACC, 16)
        a("v_mfma_f32_32x32x16_bf16 %s, %s, %s, %s" % (acc, vr(KF + t * 8, 4), vr(SACC + t * 16, 4), acc))
        a("v_mfma_f32_32x32x16_bf16 %s, %s, %s, %s" % (acc, vr(KF + t * 8 + 4, 4), vr(SACC + t * 16 + 4, 4), acc))
        a.label(sk)
    a("s_nop 15")
    a("v_or_b32 v10, 32, v2")
    a("v_lshlrev_b32 v10, 2, v10")
    a("ds_bpermute_b32 v11, v10, v%d" % (OACC + 8))
    a("s_waitcnt lgkmcnt(0)")
    a("v_rcp_f32 v11, v11")
    a("s_nop 0")
    for i in range(12):
        a("v_mul_f32 v%d, v%d, v11" % (OACC + i, OACC + i))
    for rg in range(3):
        a("v_cvt_pk_bf16_f32 v%d, v%d, v%d" % (OACC + rg * 4, OACC + rg * 4, OACC + rg * 4 + 1))
        a("v_cvt_pk_bf16_f32 v%d, v%d, v%d" % (OACC + rg * 4 + 1, OACC + rg * 4 + 2, OACC + rg * 4 + 3))
    a("s_add_u32 s38, s38, s27")
    a("v_add_u32 v12, s38, v3")
    a("v_mul_u32_u24 v12, 1280, v12")
    a("v_lshl_add_u32 v12, v4, 3, v12")
    a("s_mul_i32 s28, s24, 40")
    a("v_add_u32 v12, s28, v12")
    a("buffer_store_dwordx2 %s, v12, s[20:23], 0 offen" % vr(OACC, 2))
    a("buffer_store_dwordx2 %s, v12, s[20:23], 0 offen offset:16" % vr(OACC + 4, 2))
    a("v_cmp_eq_u32 vcc, 0, v4")
    a("s_and_saveexec_b64 s[44:45], vcc")
    a("buffer_store_dwordx2 %s, v12, s[20:23], 0 offen offset:32" % vr(OACC + 8, 2))
    a.label(end)
    a("s_endpgm")


def f32bits(x):
    import struct
    return struct.unpack("<I", struct.pack("<f", x))[0]


def gen_gemm2(a, name, STAGES=5):
    kernel_header(a, name)
    end = a.newlabel("g2_end")
    a("s_cmp_ge_u32 s2, 160")
    a("s_cbranch_scc1 %s" % end)
    a("s_load_dwordx2 s[4:5], s[0:1], %d" % KA_WO)
    a("s_load_dwordx2 s[6:7], s[0:1], %d" % KA_W2)
    a("s_load_dwordx2 s[8:9], s[0:1], %d" % KA_WS)
    a("s_load_dwordx2 s[10:11], s[0:1], %d" % KA_X)
    a("s_load_dwordx2 s[50:51], s[0:1], %d" % KA_OUT)
    a("s_and_b32 s24, s2, 15")
    a("s_lshr_b32 s25, s2, 4")
    a("v_lshrrev_b32 v1, 6, v0")
    a("s_nop 0")
    a("v_readfirstlane_b32 s26, v1")
    a("v_and_b32 v2, 63, v0")
    a("s_waitcnt lgkmcnt(0)")
    a("s_lshr_b32 s29, s26, 1")
    a("s_and_b32 s30, s26, 1")
    a("v_and_b32 v3, 31, v2")
    a("v_lshrrev_b32 v4, 5, v2")
    a("s_lshl_b32 s31, s24, 7")
    a("s_lshl_b32 s32, s29, 6")
    a("s_add_u32 s31, s31, s32")
    a("v_add_u32 v5, s31, v3")
    a("v_lshrrev_b32 v8, 3, v2")
    a("v_lshrrev_b32 v9, 4, v2")
    a("s_and_b32 s33, s26, 1")
    a("s_lshl_b32 s33, s33, 2")
    a("v_add_u32 v9, s33, v9")
    a("v_and_b32 v10, 7, v2")
    a("v_xor_b32 v9, v9, v10")
    a("v_lshlrev_b32 v9, 4, v9")
    a("s_lshl_b32 s34, s24, 7")
    a("s_lshl_b32 s35, s26, 3")
    a("s_add_u32 s34, s34, s35")
    a("s_lshl_b32 s36, s26, 10")
    a("v_lshrrev_b32 v10, 3, v2")
    a("v_and_b32 v11, 7, v2")
    a("v_bfe_u32 v12, v2, 4, 1")
    a("v_lshlrev_b32 v12, 2, v12")
    a("v_xor_b32 v11, v11, v12")
    a("v_lshlrev_b32 v11, 4, v11")
    a("v_mul_u32_u24 v10, 1280, v10")
    a("s_lshl_b32 s28, s25, 7")
    a("v_add3_u32 v128, v10, v11, s28")
    a("s_lshl_b32 s37, s26, 11")
    a("s_mov_b32 s46, %d" % (64 * 1280))
    a("v_add_u32 v10, s32, v3")
    a("v_bfe_u32 v11, v10, 1, 3")
    a("v_lshlrev_b32 v12, 2, v4")
    a("v_xor_b32 v11, v11, v12")
    a("v_lshlrev_b32 v10, 7, v10")
    for j in range(4):
        a("v_xor_b32 v12, %d, v11" % j)
        a("v_lshl_add_u32 v%d, v12, 4, v10" % (16 + j))
    a("v_bfe_u32 v10, v2, 2, 2")
    a("v_and_b32 v11, 3, v2")
    a("v_bfe_u32 v12, v2, 4, 1")
    a("v_lshl_add_u32 v13, v4, 5, v10")
    a("v_lshlrev_b32 v13, 7, v13")
    a("v_lshl_add_u32 v13, v12, 5, v13")
    a("v_lshl_add_u32 v13, v11, 3, v13")
    a("v_bfe_u32 v14, v10, 1, 1")
    a("v_xor_b32 v14, s30, v14")
    a("v_lshl_add_u32 v14, v14, 6, v13")

    c = GemmCfg()
    c.nwaves = 4
    c.a_bytes = 128 * 128
    c.w_bytes = 64 * 128
    c.wrow = 128
    c.a_dma = 4
    c.w_dma = 2
    c.s_m0a = 36
    c.s_m0w = 37
    c.v_wdma = 128
    c.a_srd = 12
    c.w_srd = 16
    c.s_aoff = 40
    c.s_woff = 44
    c.s_wstep = 46
    c.TM = 2
    c.TN = 1
    c.AF = (132, 140)
    c.BF = (44, 48)
    c.v_ard = [16, 17, 18, 19]
    c.v_brd = (14,)
    c.s_cnt = 47
    c.rd_buf_stride = 6
    c.stages = STAGES
    c.vtile = False
    ACC1 = 64
    ACC2 = 96

    srd_off(a, 12, 8, O_OFF, O_SZ)
    srd(a, 16, 4, 640 * 1280)
    srd_off(a, 56, 8, H_OFF, H_SZ)
    srd(a, 60, 6, 1536 * 1280)
    p1 = Phase()
    p1.a_srd, p1.w_srd, p1.v_adma, p1.s_aoff, p1.s_woff, p1.ACC = 12, 16, 129, 40, 44, ACC1
    p2 = Phase()
    p2.a_srd, p2.w_srd, p2.v_adma, p2.s_aoff, p2.s_woff, p2.ACC = 56, 60, 130, 64, 68, ACC2
    for ph, a_stride in ((p1, 1280), (p2, 3072)):
        a("v_mul_u32_u24 v%d, %d, v8" % (ph.v_adma, a_stride))
        a("v_add_u32 v%d, v%d, v9" % (ph.v_adma, ph.v_adma))
        a("s_mul_i32 s%d, s34, %d" % (ph.s_aoff, a_stride))
        for e in range(1, 4):
            a("s_add_u32 s%d, s%d, %d" % (ph.s_aoff + e, ph.s_aoff, e * 32 * a_stride))
        a("s_mul_i32 s%d, s26, %d" % (ph.s_woff, 16 * 1280))
        a("s_add_u32 s%d, s%d, %d" % (ph.s_woff + 1, ph.s_woff, 8 * 1280))
    gemm_stream(a, c, [p1] * 10 + [p2] * 24)
    a("s_nop 15")
    srd(a, 20, 10, 2048 * 1280)
    srd(a, 40, 50, 2048 * 1280)
    a("v_and_b32 v21, 15, v0")
    a("v_lshrrev_b32 v22, 4, v0")
    a("s_lshl_b32 s52, s24, 7")
    a("v_add_u32 v23, s52, v22")
    a("v_mul_u32_u24 v23, 1280, v23")
    a("v_lshl_add_u32 v23, v21, 3, v23")
    a("s_lshl_b32 s52, s25, 7")
    a("v_add_u32 v23, s52, v23")
    XB = 32
    a("s_mov_b32 s53, 0")
    for i in range(8):
        a("buffer_load_dwordx2 %s, v23, s[20:23], s53 offen" % vr(XB + i * 2, 2))
        a("s_add_u32 s53, s53, %d" % (16 * 1280))
    a("s_mov_b32 s54, 0xbfb8aa3b")
    a("s_barrier")
    a("v_add_u32 v20, s32, v3")
    a("v_mul_u32_u24 v20, 136, v20")
    a("v_lshl_add_u32 v20, v4, 3, v20")
    a("s_lshl_b32 s52, s30, 6")
    a("v_add_u32 v20, s52, v20")
    for tm in range(2):
        for rg in range(4):
            for i in range(4):
                s_ = ACC1 + tm * 16 + rg * 4 + i
                t_ = ACC2 + tm * 16 + rg * 4 + i
                bf16_round(a, s_)
                bf16_round(a, t_)
                a("v_mul_f32 v60, s54, v%d" % t_)
                a("v_exp_f32 v60, v60")
                a("s_nop 0")
                a("v_add_f32 v60, 1.0, v60")
                a("v_rcp_f32 v61, v60")
                a("s_nop 0")
                a("v_mul_f32 v%d, v%d, v61" % (t_, t_))
                bf16_round(a, t_)
                a("v_mul_f32 v%d, v%d, v%d" % (s_, s_, t_))
            s0 = ACC1 + tm * 16 + rg * 4
            a("v_cvt_pk_bf16_f32 v%d, v%d, v%d" % (s0, s0, s0 + 1))
            a("v_cvt_pk_bf16_f32 v%d, v%d, v%d" % (s0 + 1, s0 + 2, s0 + 3))
            a("ds_write_b64 v20, %s offset:%d" % (vr(s0, 2), tm * 32 * 136 + rg * 16))
    a("s_waitcnt lgkmcnt(0)")
    a("s_barrier")
    a("v_mul_u32_u24 v24, 136, v22")
    a("v_lshl_add_u32 v24, v21, 3, v24")
    for i in range(8):
        a("ds_read_b64 %s, v24 offset:%d" % (vr(64 + i * 2, 2), i * 16 * 136))
    a("s_waitcnt vmcnt(0) lgkmcnt(0)")
    a("s_mov_b32 s53, 0")
    for i in range(8):
        xb = XB + i * 2
        pb = 64 + i * 2
        for k in range(2):
            a("v_lshlrev_b32 v60, 16, v%d" % (xb + k))
            a("v_and_b32 v61, 0xffff0000, v%d" % (xb + k))
            a("v_lshlrev_b32 v62, 16, v%d" % (pb + k))
            a("v_and_b32 v63, 0xffff0000, v%d" % (pb + k))
            a("v_add_f32 v60, v60, v62")
            a("v_add_f32 v61, v61, v63")
            a("v_cvt_pk_bf16_f32 v%d, v60, v61" % (pb + k))
        a("buffer_store_dwordx2 %s, v23, s[40:43], s53 offen" % vr(pb, 2))
        a("s_add_u32 s53, s53, %d" % (16 * 1280))
    a.label(end)
    a("s_endpgm")


def main():
    hdr = open("cdna_kernels/%s.s.ref" % NAME).read().split("\n")
    head = [l for l in hdr if l.startswith(";") and "@launch" not in l]
    a = Asm()
    launches = [
        ("ln_kernel", 512, 256, 0),
        ("gemm1_kernel", 216, 512, 3*49152),
        ("attn_kernel", 512, 256, 35840),
        ("gemm2_kernel", 160, 256, 5*24576),
    ]
    out = "\n".join(head) + "\n"
    for k, g, b, l in launches:
        out += "; @launch kernel=%s grid=(%d,1,1) block=(%d,1,1) lds=%d\n" % (k, g, b, l)
    out += '.amdgcn_target "amdgcn-amd-amdhsa--gfx950"\n.text\n'
    gen_ln(a, "ln_kernel")
    gen_gemm1(a, "gemm1_kernel")
    gen_attn(a, "attn_kernel")
    gen_gemm2(a, "gemm2_kernel")
    out += a.text()
    out += '.section .rodata,"a"\n.p2align 6\n'
    out += kernel_desc("ln_kernel", 64)
    out += ".p2align 6\n" + kernel_desc("gemm1_kernel", 128)
    out += ".p2align 6\n" + kernel_desc("attn_kernel", 256)
    out += ".p2align 6\n" + kernel_desc("gemm2_kernel", 152)
    open(OUT, "w").write(out)


if __name__ == "__main__":
    main()
```
